```python
import torch

def _softmax(x, axis=-1):
    return torch.softmax(x, dim=axis)
def _gelu(x):
    return torch.nn.functional.gelu(x, approximate="tanh")
def _silu(x):
    return torch.nn.functional.silu(x)
def _sigmoid(x):
    return torch.sigmoid(x)
def _layernorm(x, axis=-1, eps=1e-5):
    m = x.mean(dim=axis, keepdim=True)
    v = x.var(dim=axis, keepdim=True, unbiased=False)
    return (x - m) / torch.sqrt(v + eps)
def _scatter_add(tgt, idx, src, axis=0):
    return tgt.clone().index_add_(axis, idx, src)
def _segment_sum(src, seg, n):
    out = torch.zeros((n,) + src.shape[1:], dtype=src.dtype)
    return out.index_add_(0, seg, src)
def _pad(x, pw):
    flat = tuple(v for pair in reversed(pw) for v in pair)
    return torch.nn.functional.pad(x, flat)

kernel_name = 'interleave_layers__spectral_gfnet__glu_gated_swiglu__prompt'

def setup_inputs():

    _w = (lambda a: (lambda t: t.to(torch.bfloat16) if t.is_floating_point() else t)(torch.as_tensor(a)))
    def _A_setup():
        B, S, D = 1, 2048, 512
        Df = D // 2 + 1
        return {
            "x": _w((lambda *s: torch.randn(*s, dtype=torch.bfloat16) * 0.05)(B, S, D)),
            "w_r": _w((lambda *s: torch.randn(*s, dtype=torch.bfloat16) * 0.4)(S, Df) * 0.02),
            "w_i": _w((lambda *s: torch.randn(*s, dtype=torch.bfloat16) * 0.4)(S, Df) * 0.02),
        }
    _A_in = _A_setup()

    def _B_setup():
        B, S, D, F = 1, 2048, 512, 1792
        return {
            "x": _w((lambda *s: torch.randn(*s, dtype=torch.bfloat16) * 0.05)(B, S, D)),
            "w1": _w((lambda *s: torch.randn(*s, dtype=torch.bfloat16) * 0.2)(D, F) * (2.0 / D) ** 0.5),
            "w3": _w((lambda *s: torch.randn(*s, dtype=torch.bfloat16) * 0.2)(D, F) * (2.0 / D) ** 0.5),
            "w2": _w((lambda *s: torch.randn(*s, dtype=torch.bfloat16) * 0.2)(F, D) * (2.0 / F) ** 0.5),
        }
    _B_in = _B_setup()

    return {
        "A_x": _A_in["x"],
        "A_w_r": _A_in["w_r"],
        "A_w_i": _A_in["w_i"],
        "B_x": _B_in["x"],
        "B_w1": _B_in["w1"],
        "B_w3": _B_in["w3"],
        "B_w2": _B_in["w2"],
    }

def reference(A_x, A_w_r, A_w_i, B_x, B_w1, B_w3, B_w2):
    def _A_ref(x, w_r, w_i):
        B, S, D = x.shape
        X = (lambda x, axes=(-2,-1): torch.fft.rfft2(x.float(), dim=axes))(x, axes=(-2, -1))
        W = w_r + 1j * w_i
        X = X * W
        y = (lambda x, s, axes=(-2,-1): torch.fft.irfft2(x, s=s, dim=axes).to(torch.bfloat16))(X, (S, D), axes=(-2, -1))
        return y

    def _B_ref(x, w1, w3, w2):
        gate = torch.einsum("bsd,df->bsf", x, w1)
        up = torch.einsum("bsd,df->bsf", x, w3)
        h = _silu(gate) * up
        out = torch.einsum("bsf,fd->bsd", h, w2)
        return out

    x = A_x
    x = x + _A_ref(_layernorm(x, axis=-1), A_w_r, A_w_i)
    x = x + _B_ref(_layernorm(x, axis=-1), B_w1, B_w3, B_w2)
    x = x + _A_ref(_layernorm(x, axis=-1), A_w_r, A_w_i)
    x = x + _B_ref(_layernorm(x, axis=-1), B_w1, B_w3, B_w2)
    return x
```

```python
import re

class Asm:
    def __init__(self):
        self.lines = []
    def __call__(self, *txt):
        for t in txt:
            for l in t.split("\n"):
                l = l.strip()
                if l:
                    self.lines.append(l)
    def label(self, name):
        self.lines.append(name + ":")
    def comment(self, t):
        self.lines.append("; " + t)

def vr(b, n=1, k="v"):
    return f"{k}{b}" if n == 1 else f"{k}[{b}:{b+n-1}]"
def ar(b, n=1): return vr(b, n, "a")
def sr(b, n=1): return vr(b, n, "s")

_reg = re.compile(r"^(-|\|)?([vas])(\d+)\|?$")
_regr = re.compile(r"^(-|\|)?([vas])\[(\d+):(\d+)\]\|?$")

def regs_of(op):
    op = op.strip()
    m = _reg.match(op)
    if m: return {(m.group(2), int(m.group(3)))}
    m = _regr.match(op)
    if m: return {(m.group(2), i) for i in range(int(m.group(3)), int(m.group(4)) + 1)}
    if op == "vcc": return {("s", "vcc")}
    if op == "exec": return {("s", "exec")}
    if op == "m0": return {("s", "m0")}
    return set()

TRANS = ("v_exp_f32", "v_log_f32", "v_rcp_f32", "v_rsq_f32", "v_sqrt_f32", "v_sin_f32", "v_cos_f32", "v_rcp_iflag_f32")

class Ins:
    __slots__ = ("text", "mn", "ops", "kind", "w", "r", "mfma", "isnop", "nopn", "target", "uncond", "dpp")
    def __init__(self, text):
        self.text = text
        t = text.split(";")[0].strip()
        parts = t.split(None, 1)
        mn = parts[0]
        self.mn = mn
        rest = parts[1] if len(parts) > 1 else ""
        ops = []; cur = ""; depth = 0
        for ch in rest:
            if ch == "[": depth += 1
            if ch == "]": depth -= 1
            if ch == "," and depth == 0:
                ops.append(cur.strip()); cur = ""
            else: cur += ch
        if cur.strip(): ops.append(cur.strip())
        mods = ""
        if ops:
            sp = ops[-1].split(None, 1)
            if len(sp) > 1:
                ops[-1] = sp[0]; mods = sp[1]
        self.ops = ops
        self.w = set(); self.r = set(); self.mfma = None
        self.isnop = mn == "s_nop"; self.nopn = int(ops[0]) + 1 if self.isnop else 1
        self.target = None; self.uncond = False
        self.dpp = ("row_" in mods or "quad_perm" in mods or "wave_" in mods or "_dpp" in mn)
        R = lambda i: regs_of(ops[i]) if i < len(ops) else set()
        allr = lambda lo: set().union(*[regs_of(o) for o in ops[lo:]]) if len(ops) > lo else set()
        if mn.startswith("v_mfma"):
            self.kind = "mfma"
            self.w = R(0); self.r = allr(1)
            passes = 8 if "32x32" in mn else 4
            self.mfma = (passes, ops[0], ops[3], R(1) | R(2), R(3))
        elif mn.startswith("v_"):
            self.kind = "trans" if mn.replace("_e32", "").replace("_e64", "") in TRANS else "valu"
            if "permlane" in mn and "swap" in mn:
                self.w = R(0) | R(1); self.r = R(0) | R(1)
            elif mn.startswith(("v_add_co", "v_addc_co", "v_sub_co", "v_subb_co", "v_subrev_co")):
                self.w = R(0) | R(1); self.r = allr(2)
            elif mn.startswith("v_cmpx"):
                self.w = {("s", "exec")} | R(0); self.r = allr(1)
            else:
                self.w = R(0); self.r = allr(1)
                if mn.startswith(("v_fmac", "v_mac", "v_dot2c", "v_pk_fmac", "v_writelane")) or self.dpp:
                    self.r |= R(0)
        elif mn.startswith("ds_"):
            self.kind = "ds"
            if mn.startswith(("ds_read", "ds_bpermute", "ds_permute", "ds_swizzle")):
                self.w = R(0); self.r = allr(1)
            else:
                self.r = allr(0)
        elif mn.startswith(("global_", "buffer_", "flat_")):
            self.kind = "vmem"
            if "load_lds" in mn or (" lds" in (" " + mods)):
                self.r = allr(0) | {("s", "m0")}
            elif "load" in mn:
                self.w = R(0); self.r = allr(1)
            elif "atomic" in mn:
                self.r = allr(0)
            else:
                self.r = allr(0)
        elif mn.startswith("s_"):
            self.kind = "salu"
            if mn.startswith(("s_cbranch", "s_branch")):
                self.target = ops[0]; self.uncond = mn == "s_branch"
            elif mn == "s_endpgm":
                self.uncond = True
            elif mn.startswith(("s_cmp", "s_waitcnt", "s_barrier", "s_nop", "s_setprio", "s_sleep", "s_bitcmp")):
                self.r = allr(0)
            else:
                self.w = R(0); self.r = allr(1)
                if "saveexec" in mn: self.w |= {("s", "exec")}
        else:
            raise ValueError("unknown instr " + text)

def isvalu(i): return i.kind in ("valu", "trans")
def vg(S): return {x for x in S if x[0] in "va"}
def sg(S): return {x for x in S if x[0] == "s"}

def need(p, c):
    n = 0
    if p.kind == "mfma":
        passes, dtxt, ctxt, ab, cc = p.mfma
        big = passes == 8
        if c.kind == "mfma":
            cp, cd, cctxt, cab, ccc = c.mfma
            if p.w & cab: n = max(n, 12 if big else 8)
            if p.w & ccc:
                if not (cctxt == dtxt and cp == passes): n = max(n, 10 if big else 6)
        else:
            if p.w & (c.r | c.w): n = max(n, 12 if big else 8)
            if isvalu(c) and (cc & c.w): n = max(n, 7 if big else 3)
    if isvalu(p):
        pv = vg(p.w); ps = sg(p.w)
        if c.kind == "mfma" and (pv & c.r): n = max(n, 2)
        if p.kind == "trans" and (pv & c.r) and c.kind != "trans": n = max(n, 1)
        if isvalu(c):
            if ("permlane" in c.mn or c.dpp) and (pv & c.r): n = max(n, 2)
            if c.mn.startswith(("v_readlane", "v_readfirstlane")) and (pv & c.r): n = max(n, 1)
            if ps & c.r: n = max(n, 4 if c.mn.startswith(("v_readlane", "v_writelane")) else 2)
            if ("op_sel" in p.text or "dst_sel" in p.text) and not p.mn.startswith("v_pk_") and (pv & (c.r | c.w)): n = max(n, 1)
            if p.mn.startswith("v_dot") and (pv & (c.r | c.w)):
                same = c.mn == p.mn and c.ops[-1:] == p.ops[:1] and not (pv & (regs_of(c.ops[1]) | regs_of(c.ops[2])))
                if not same: n = max(n, 3)
        elif p.mn.startswith("v_dot") and (pv & (c.r | c.w)): n = max(n, 3)
        if c.kind == "vmem" and (ps & c.r): n = max(n, 5)
        if ("s", "exec") in ps and c.kind == "mfma": n = max(n, 4)
    if p.kind == "vmem" and ("store" in p.mn or "atomic" in p.mn) and ("x4" in p.mn or "x3" in p.mn):
        data = regs_of(p.ops[1])
        if data & c.w: n = max(n, 2 if isvalu(c) else 1)
    if p.kind == "salu" and ("s", "m0") in p.w and c.kind == "vmem" and ("s", "m0") in c.r: n = max(n, 1)
    return n

MAXW = 12
def fix_hazards(lines, verbose=False):
    items = []
    for l in lines:
        if l.startswith(";") or l.startswith("."):
            items.append(("x", l))
        elif l.endswith(":"):
            items.append(("l", l[:-1]))
        else:
            items.append(("i", Ins(l)))
    total = 0
    def maps():
        labels = {v: i for i, (k, v) in enumerate(items) if k == "l"}
        br = {}
        for i, (k, v) in enumerate(items):
            if k == "i" and v.target in labels:
                br.setdefault(labels[v.target], []).append(i)
        return br
    for rnd in range(3):
        branches = maps()
        i = 0; nins = 0
        while i < len(items):
            k, c = items[i]
            if k != "i" or c.isnop:
                i += 1; continue
            worst = 0
            stack = [(i - 1, 0, True)]; seen = {}
            while stack:
                j, d, ft = stack.pop()
                if j < 0 or d >= MAXW: continue
                kk, p = items[j]
                if kk == "i" and ft and p.uncond: continue
                if seen.get(j, 99) <= d: continue
                seen[j] = d
                if kk == "x": stack.append((j - 1, d, True)); continue
                if kk == "l":
                    stack.append((j - 1, d, True))
                    for b in branches.get(j, []): stack.append((b, d, False))
                    continue
                nd = need(p, c)
                if nd > d: worst = max(worst, nd - d)
                stack.append((j - 1, d + p.nopn, True))
            if worst:
                if verbose: print("nop", worst, "before", c.text)
                n = worst; total += n; nins += 1
                while n > 0:
                    m = min(n, 8); items.insert(i, ("i", Ins(f"s_nop {m-1}"))); n -= m; i += 1
                branches = maps()
            i += 1
        if nins == 0: break
    res = []
    for k, v in items:
        res.append(v if k == "x" else (v + ":" if k == "l" else v.text))
    return res, total
```

```python
import sys, math
from asmgen import *

MB = 1 << 20
OFF = dict(ZA=0, ZB=2*MB, SSQ=4*MB, W13=5*MB, H=9*MB, W2P=16*MB, W2T=18*MB, WF=20*MB, X3=22*MB)
NAME = "interleave_layers__spectral_gfnet__glu_gated_swiglu__prompt"
import struct
def f2u(x): return struct.unpack("<I", struct.pack("<f", x))[0]
def fl(x): return hex(f2u(x))
INV_SQRT512 = 1/math.sqrt(512)

X, WR, WI, BX, W1, W3, W2, OUT, DBG, WS = 4, 6, 8, 10, 12, 14, 16, 18, 20, 22

def prologue(A, name, nwg):
    A(f"s_cmp_ge_u32 s2, {nwg}", f"s_cbranch_scc1 {name}_end",
      "s_load_dwordx16 s[4:19], s[0:1], 0", "s_load_dwordx4 s[20:23], s[0:1], 64")

def sadd64(A, dst, src, off):
    A(f"s_add_u32 s{dst}, s{src}, {off}", f"s_addc_u32 s{dst+1}, s{src+1}, 0")

MF = "v_mfma_f32_16x16x32_bf16"

def gen_k1():
    A = Asm(); n = "k1"
    sW, sCR, sG, sRT, sROT, sSTR = 3, 24, 25, 26, 27, 28
    sT = [30, 32, 34, 36]; sOB, sNTS, sPS, sROLE = 38, 40, 41, 46
    t0, t1, t2, t3 = 42, 43, 44, 45
    vLane, vLP, vOL, vX0, vX1 = 2, 3, 4, 5, 6
    vRho, vKq = 7, 8
    vA = 9
    ACC = 128; FB = [64, 80]; WB = [96, 112]
    prologue(A, n, 256)
    A(f"v_lshrrev_b32 v1, 6, v0", f"v_and_b32 v{vLane}, 63, v0", f"v_readfirstlane_b32 s{sW}, v1",
      f"v_and_b32 v{vRho}, 15, v0", f"v_bfe_u32 v{vKq}, v0, 4, 2",
      f"s_lshr_b32 s{sCR}, s2, 3", f"s_and_b32 s{sCR}, s{sCR}, 7",
      f"s_and_b32 s{sG}, s2, 7", f"s_lshr_b32 s{t0}, s2, 6", f"s_lshl_b32 s{t0}, s{t0}, 3",
      f"s_add_u32 s{sG}, s{sG}, s{t0}", f"s_lshl_b32 s{sROT}, s{sCR}, 1")
    A(f"s_lshr_b32 s{t0}, s2, 2", f"s_mul_i32 s{t0}, s{t0}, 514", f"s_mul_i32 s{t1}, s{sW}, 131584",
      f"s_add_u32 s{t0}, s{t0}, s{t1}", f"s_and_b32 s{t1}, s2, 3", f"s_lshl_b32 s{t1}, s{t1}, 7",
      f"s_add_u32 s{t0}, s{t0}, s{t1}", f"s_add_u32 s{t0}, s{t0}, 2",
      f"v_lshl_add_u32 v10, v{vLane}, 1, s{t0}")
    A(f"s_lshr_b32 s{t0}, s2, 4", f"s_and_b32 s{t0}, s{t0}, 7", f"s_lshl_b32 s{t0}, s{t0}, 3",
      f"s_lshl_b32 s{t1}, s{sW}, 1", f"s_add_u32 s{t0}, s{t0}, s{t1}", f"s_lshl_b32 s{t0}, s{t0}, 5",
      f"s_and_b32 s{t1}, s2, 15", f"s_add_u32 s{t0}, s{t0}, s{t1}",
      f"s_lshr_b32 s{t1}, s2, 7", f"s_lshl_b32 s{t1}, s{t1}, 4", f"s_add_u32 s{t0}, s{t0}, s{t1}",
      f"s_lshl_b32 s{t0}, s{t0}, 10",
      f"v_lshrrev_b32 v11, 5, v{vLane}", f"v_lshlrev_b32 v11, 15, v11", f"v_and_b32 v12, 31, v{vLane}",
      f"v_lshl_add_u32 v11, v12, 5, v11", f"v_add_u32 v11, s{t0}, v11")
    A("s_waitcnt lgkmcnt(0)")
    for idx in range(8):
        mt, jj = idx >> 2, idx & 3
        off = (16*mt + jj) * 32896
        if idx: A(f"v_add_u32 v12, {off}, v10")
        r = "v10" if idx == 0 else "v12"
        A(f"global_load_ushort v{16+idx}, {r}, s[{WR}:{WR+1}]", f"global_load_ushort v{24+idx}, {r}, s[{WI}:{WI+1}]")
    A(f"global_load_dwordx4 v[32:35], v11, s[{X}:{X+1}]", f"global_load_dwordx4 v[36:39], v11, s[{X}:{X+1}] offset:16")
    A(f"s_mov_b32 s{sROLE}, 3", f"s_cmp_ge_u32 s{sG}, 29", f"s_cbranch_scc1 {n}_r1done",
      f"s_cmp_ge_u32 s{sG}, 15", f"s_cbranch_scc1 {n}_role_c",
      f"s_cmp_ge_u32 s{sG}, 8", f"s_cbranch_scc1 {n}_role_b")
    A(f"s_mov_b32 s{sROLE}, 0",
      f"s_lshr_b32 s{t0}, s{sW}, 1", f"s_lshl_b32 s{t0}, s{t0}, 18",
      f"s_and_b32 s{t1}, s{sG}, 3", f"s_lshl_b32 s{t1}, s{t1}, 19", f"s_add_u32 s{t0}, s{t0}, s{t1}",
      f"s_and_b32 s{t1}, s{sW}, 1", f"s_lshl_b32 s{t1}, s{t1}, 13", f"s_add_u32 s{t0}, s{t0}, s{t1}",
      f"s_lshr_b32 s{t1}, s{sG}, 2", f"s_lshl_b32 s{t1}, s{t1}, 14", f"s_add_u32 s{t0}, s{t0}, s{t1}")
    sadd64(A, sT[0], X, f"s{t0}"); sadd64(A, sT[1], sT[0], 131072); sadd64(A, sT[2], sT[0], 4096); sadd64(A, sT[3], sT[0], 135168)
    A(f"v_and_b32 v12, 3, v{vRho}", f"v_lshlrev_b32 v12, 15, v12", f"v_lshrrev_b32 v13, 2, v{vRho}",
      f"v_lshl_add_u32 v12, v13, 10, v12", f"v_lshl_add_u32 v{vLP}, v{vKq}, 4, v12",
      f"s_mov_b32 s{sSTR}, 64",
      f"s_lshl_b32 s{t0}, s{sCR}, 18", f"s_lshl_b32 s{t1}, s{sG}, 9", f"s_add_u32 s{t0}, s{t0}, s{t1}",
      f"s_lshl_b32 s{t1}, s{sW}, 7", f"s_add_u32 s{t0}, s{t0}, s{t1}")
    if OFF["ZA"]: A(f"s_add_u32 s{t0}, s{t0}, {OFF['ZA']}")
    sadd64(A, sOB, WS, f"s{t0}")
    A(f"v_lshlrev_b32 v12, 12, v{vRho}", f"v_lshl_add_u32 v{vOL}, v{vKq}, 4, v12",
      f"s_mov_b32 s{sNTS}, 65536", f"s_mov_b32 s{sPS}, 64", f"s_branch {n}_ab_common")
    A.label(f"{n}_role_b")
    A(f"s_mov_b32 s{sROLE}, 1", f"s_sub_u32 s{sRT}, s{sG}, 8",
      f"s_lshl_b32 s{t0}, s{sRT}, 18", f"s_lshl_b32 s{t1}, s{sW}, 16", f"s_add_u32 s{t0}, s{t0}, s{t1}")
    sadd64(A, sT[0], W2, f"s{t0}"); sadd64(A, sT[1], sT[0], 16384); sadd64(A, sT[2], sT[0], 32768); sadd64(A, sT[3], sT[0], 49152)
    A(f"v_lshlrev_b32 v12, 10, v{vRho}", f"v_lshl_add_u32 v{vLP}, v{vKq}, 4, v12",
      f"s_mov_b32 s{sSTR}, 64",
      f"s_mul_i32 s{t0}, s{sCR}, {4*56}", f"s_lshl_b32 s{t1}, s{sRT}, 3", f"s_add_u32 s{t0}, s{t0}, s{t1}",
      f"s_lshl_b32 s{t1}, s{sW}, 1", f"s_add_u32 s{t0}, s{t0}, s{t1}", f"s_lshl_b32 s{t0}, s{t0}, 10",
      f"s_add_u32 s{t0}, s{t0}, {OFF['W2P']}")
    sadd64(A, sOB, WS, f"s{t0}")
    A(f"v_lshlrev_b32 v{vOL}, 4, v{vLane}", f"s_mov_b32 s{sNTS}, 57344", f"s_mov_b32 s{sPS}, 1024")
    A.label(f"{n}_ab_common")
    A(f"v_lshlrev_b32 v12, 10, v{vKq}", f"v_lshl_add_u32 v{vX0}, v{vRho}, 4, v12",
      f"v_xor_b32 v{vX1}, 64, v{vX0}", f"v_add_u32 v{vX1}, 256, v{vX1}", f"s_branch {n}_r1")
    A.label(f"{n}_role_c")
    A(f"s_mov_b32 s{sROLE}, 2", f"s_sub_u32 s{sRT}, s{sG}, 15",
      f"s_cmp_ge_u32 s{sW}, 2", f"s_cselect_b32 s{sT[0]}, s{W3}, s{W1}", f"s_cselect_b32 s{sT[0]+1}, s{W3+1}, s{W1+1}",
      f"s_lshl_b32 s{t0}, s{sRT}, 8", f"s_and_b32 s{t1}, s{sW}, 1", f"s_lshl_b32 s{t1}, s{t1}, 7",
      f"s_add_u32 s{t0}, s{t0}, s{t1}")
    sadd64(A, sT[0], sT[0], f"s{t0}"); sadd64(A, sT[1], sT[0], 28672); sadd64(A, sT[2], sT[0], 2*28672); sadd64(A, sT[3], sT[0], 3*28672)
    A(f"v_lshrrev_b32 v12, 3, v{vLane}", f"v_mul_u32_u24 v12, 3584, v12", f"v_and_b32 v13, 7, v{vLane}",
      f"v_lshl_add_u32 v{vLP}, v13, 4, v12",
      f"s_mov_b32 s{sSTR}, 114688",
      f"s_lshl_b32 s{t0}, s{sRT}, 18", f"s_lshl_b32 s{t1}, s{sCR}, 15", f"s_add_u32 s{t0}, s{t0}, s{t1}",
      f"s_and_b32 s{t1}, s{sW}, 1", f"s_lshl_b32 s{t1}, s{t1}, 13", f"s_add_u32 s{t0}, s{t0}, s{t1}",
      f"s_lshr_b32 s{t1}, s{sW}, 1", f"s_lshl_b32 s{t1}, s{t1}, 10", f"s_add_u32 s{t0}, s{t0}, s{t1}",
      f"s_add_u32 s{t0}, s{t0}, {OFF['W13']}")
    sadd64(A, sOB, WS, f"s{t0}")
    A(f"v_lshlrev_b32 v{vOL}, 4, v{vLane}", f"s_mov_b32 s{sNTS}, 2048", f"s_mov_b32 s{sPS}, 16384",
      f"v_lshrrev_b32 v12, 2, v{vRho}", f"v_lshlrev_b32 v12, 3, v12", f"v_lshrrev_b32 v13, 3, v{vRho}",
      f"v_lshl_add_u32 v12, v13, 2, v12", f"v_and_b32 v13, 3, v{vRho}", f"v_add_u32 v12, v12, v13",
      f"v_lshlrev_b32 v12, 4, v12", f"v_lshl_add_u32 v{vX0}, v{vKq}, 10, v12", f"v_xor_b32 v{vX1}, 64, v{vX0}")
    A.label(f"{n}_r1")
    A(f"s_lshl_b32 s{t0}, s{sROT}, 12", f"v_add_u32 v{vX0}, s{t0}, v{vX0}", f"v_add_u32 v{vX1}, s{t0}, v{vX1}")
    def chunk_loads(j):
        L = [f"s_xor_b32 s{t0}, s{sROT}, {j}", f"s_mul_i32 s{t0}, s{t0}, s{sSTR}", f"v_add_u32 v{vA}, s{t0}, v{vLP}"]
        for pi in range(4):
            L.append(f"global_load_dwordx4 a[{16*j+4*pi}:{16*j+4*pi+3}], v{vA}, s[{sT[pi]}:{sT[pi]+1}]")
        return L
    NR1 = 11
    for j in range(NR1): A(*chunk_loads(j))
    A.label(f"{n}_r1done")
    A(f"s_lshl_b32 s{t0}, s2, 1", f"v_lshrrev_b32 v12, 7, v0", f"v_add_u32 v12, s{t0}, v12", f"v_and_b32 v12, 15, v12",
      f"v_bfe_u32 v13, v0, 1, 4",
      f"v_bfe_u32 v14, v0, 5, 2",
      f"v_lshrrev_b32 v15, 1, v12", f"v_lshlrev_b32 v15, 5, v15",
      f"v_and_b32 v12, 1, v12", f"v_lshl_add_u32 v15, v12, 2, v15",
      f"v_lshrrev_b32 v12, 2, v13", f"v_lshl_add_u32 v15, v12, 3, v15",
      f"v_and_b32 v12, 3, v13", f"v_add_u32 v15, v15, v12",
      f"s_lshr_b32 s{t0}, s2, 7", f"s_lshl_b32 s{t0}, s{t0}, 8", f"v_add_u32 v15, s{t0}, v15",
      f"s_lshr_b32 s{t0}, s2, 3", f"s_and_b32 s{t0}, s{t0}, 15", f"s_lshl_b32 s{t0}, s{t0}, 4", f"s_add_u32 s{t0}, s{t0}, 1",
      f"v_and_b32 v12, 1, v0", f"v_lshlrev_b32 v12, 1, v12", f"v_lshl_add_u32 v12, v14, 2, v12", f"v_add_u32 v12, s{t0}, v12",
      f"v_mul_u32_u24 v13, v12, v15", f"v_add_u32 v14, v13, v15",
      f"v_and_b32 v13, 511, v13", f"v_and_b32 v14, 511, v14",
      f"v_cvt_f32_u32 v13, v13", f"v_cvt_f32_u32 v14, v14",
      f"v_mul_f32 v13, {fl(1/512)}, v13", f"v_mul_f32 v14, {fl(1/512)}, v14",
      f"v_cmp_eq_u32 vcc, 255, v12",
      f"v_cos_f32 v40, v13", f"v_sin_f32 v41, v13", f"v_cos_f32 v42, v14", f"v_sin_f32 v43, v14",
      f"v_mov_b32 v44, {fl(1/16)}", f"v_mov_b32 v45, {fl(INV_SQRT512)}",
      f"v_cndmask_b32 v46, v44, v45, vcc",
      f"v_mul_f32 v40, v44, v40", f"v_mul_f32 v41, {fl(-1/16)}, v41", f"v_mul_f32 v42, v46, v42", f"v_mul_f32 v43, {fl(-1/16)}, v43",
      f"v_cndmask_b32 v43, v43, v45, vcc",
      f"v_cvt_pk_bf16_f32 v40, v40, v41", f"v_cvt_pk_bf16_f32 v41, v42, v43",
      f"s_lshl_b32 s{t0}, s2, 11", f"s_add_u32 s{t0}, s{t0}, {OFF['W13'] + 14*262144}",
      f"v_lshl_add_u32 v12, v0, 3, s{t0}",
      f"global_store_dwordx2 v12, v[40:41], s[{WS}:{WS+1}]")
    A(f"s_cmp_eq_u32 s{sROLE}, 3", f"s_cbranch_scc1 {n}_fgen_done")
    vK, vDl, vA0, vScC, vScS, vAdS = 10, 11, 12, 13, 14, 15
    vAE, vAC, vAS = 40, 41, 42
    vM2, vMA, vMB = 43, 44, 45
    A(f"v_and_b32 v46, 31, v0", f"s_lshl_b32 s{t0}, s{sCR}, 5", f"s_add_u32 s{t0}, s{t0}, 1", f"v_add_u32 v{vK}, s{t0}, v46",
      f"v_lshrrev_b32 v47, 5, v0",
      f"v_cvt_f32_u32 v{vDl}, v{vK}", f"v_mul_f32 v{vDl}, {fl(1/512)}, v{vDl}",
      f"v_mul_u32_u24 v48, v{vK}, v47", f"v_lshlrev_b32 v48, 3, v48", f"v_and_b32 v48, 511, v48",
      f"v_cvt_f32_u32 v48, v48", f"v_mul_f32 v{vA0}, {fl(1/512)}, v48",
      f"v_cmp_eq_u32 vcc, 256, v{vK}",
      f"v_mov_b32 v48, {fl(1/16)}", f"v_mov_b32 v49, {fl(INV_SQRT512)}", f"v_cndmask_b32 v{vScC}, v48, v49, vcc",
      f"v_mov_b32 v48, {fl(-1/16)}", f"v_cndmask_b32 v{vScS}, v48, 0, vcc" if False else f"v_mov_b32 v50, 0",
      f"v_cndmask_b32 v{vScS}, v48, v50, vcc",
      f"s_cmp_eq_u32 s{sROLE}, 2", f"s_cselect_b32 s{t0}, 0, {fl(INV_SQRT512)}", f"v_mov_b32 v49, s{t0}",
      f"v_cndmask_b32 v{vAdS}, v50, v49, vcc",
      f"v_lshlrev_b32 v48, 1, v46", f"v_bfe_u32 v49, v48, 4, 1", f"v_lshlrev_b32 v49, 2, v49", f"v_xor_b32 v48, v48, v49",
      f"v_lshl_add_u32 v48, v47, 6, v48", f"v_lshlrev_b32 v{vAE}, 4, v48",
      f"v_and_b32 v48, 1, v{vK}", f"v_lshlrev_b32 v49, 4, v48",
      f"v_add_u32 v{vAC}, v{vAE}, v49", f"v_xor_b32 v{vAS}, 16, v{vAC}",
      f"v_mov_b32 v50, 0x80008000",
      f"v_mul_lo_u32 v{vM2}, v48, v50",
      f"v_bfe_u32 v49, v{vK}, 1, 1", f"v_mul_lo_u32 v{vMB}, v49, v50",
      f"v_xor_b32 v{vMA}, v{vM2}, v{vMB}",
      f"s_mov_b32 s{t1}, 2")
    A.label(f"{n}_fgen_loop")
    PC, PS, TC, TS = 52, 56, 60, 16+0
    RC, RS = 96, 104
    XC, XS = 112, 116
    A(f"v_mov_b32 v46, v{vA0}")
    for e in range(8):
        A(f"v_cos_f32 v{RC+e}, v46", f"v_sin_f32 v{RS+e}, v46")
        if e < 7: A(f"v_add_f32 v46, v46, v{vDl}")
    for e in range(8):
        A(f"v_mul_f32 v{RC+e}, v{vScC}, v{RC+e}", f"v_fma_f32 v{RS+e}, v{RS+e}, v{vScS}, v{vAdS}")
    for e in range(4):
        A(f"v_cvt_pk_bf16_f32 v{PC+e}, v{RC+2*e}, v{RC+2*e+1}", f"v_cvt_pk_bf16_f32 v{PS+e}, v{RS+2*e}, v{RS+2*e+1}")
    A(f"ds_write_b128 v{vAE}, v[{PC}:{PC+3}]", f"ds_write_b128 v{vAE}, v[{PS}:{PS+3}] offset:16")
    for r, (ac, as_, offc, offs, mc, ms) in {1: (vAC, vAS, 0, 0, vMA, vMB), 2: (vAE, vAE, 0, 16, vM2, vM2), 3: (vAC, vAS, 0, 0, vMB, vMA)}.items():
        xc, xs = (XC, XS) if r != 2 else (RC, RC+4)
        if r == 3: xc, xs = RS, RS+4
        for e in range(4): A(f"v_xor_b32 v{xc+e}, v{PC+e}, v{mc}")
        A(f"ds_write_b128 v{ac}, v[{xc}:{xc+3}] offset:{16384*r + offc}")
        for e in range(4): A(f"v_xor_b32 v{xs+e}, v{PS+e}, v{ms}")
        A(f"ds_write_b128 v{as_}, v[{xs}:{xs+3}] offset:{16384*r + offs}")
    A(f"v_lshlrev_b32 v46, 6, v{vDl}" if False else f"v_fma_f32 v{vA0}, v{vDl}, {fl(64.0)}, v{vA0}" if False else f"v_mul_f32 v46, {fl(64.0)}, v{vDl}",
      f"v_add_f32 v{vA0}, v{vA0}, v46", f"v_fract_f32 v{vA0}, v{vA0}",
      f"v_add_u32 v{vAE}, 8192, v{vAE}", f"v_add_u32 v{vAC}, 8192, v{vAC}", f"v_add_u32 v{vAS}, 8192, v{vAS}",
      f"s_sub_u32 s{t1}, s{t1}, 1", f"s_cmp_lg_u32 s{t1}, 0", f"s_cbranch_scc1 {n}_fgen_loop")
    A.label(f"{n}_fgen_done")
    A(f"s_cmp_eq_u32 s{sROLE}, 3", f"s_cbranch_scc0 {n}_w45", "s_waitcnt vmcnt(0)")
    A.label(f"{n}_w45")
    A(f"s_waitcnt vmcnt({4*NR1 + 1})")
    for e in range(4):
        A(f"v_lshl_or_b32 v{40+e}, v{17+2*e}, 16, v{16+2*e}", f"v_lshl_or_b32 v{44+e}, v{25+2*e}, 16, v{24+2*e}")
    A(f"s_and_b32 s{t0}, s2, 3", f"s_lshl_b32 s{t0}, s{t0}, 19", f"s_lshr_b32 s{t1}, s2, 2", f"s_lshl_b32 s{t1}, s{t1}, 7",
      f"s_add_u32 s{t0}, s{t0}, s{t1}", f"s_lshl_b32 s{t1}, s{sW}, 5", f"s_add_u32 s{t0}, s{t0}, s{t1}",
      f"s_add_u32 s{t0}, s{t0}, {OFF['WF']}", f"v_lshlrev_b32 v12, 13, v{vLane}", f"v_add_u32 v12, s{t0}, v12",
      f"global_store_dwordx4 v12, v[40:43], s[{WS}:{WS+1}]", f"global_store_dwordx4 v12, v[44:47], s[{WS}:{WS+1}] offset:16")
    for e in range(8):
        A(f"v_lshlrev_b32 v{48+2*e}, 16, v{32+e}", f"v_and_b32 v{49+2*e}, 0xffff0000, v{32+e}")
    def red32(r, tmp):
        for sh in (8, 4, 2, 1):
            A(f"v_add_f32_dpp v{r}, v{r}, v{r} row_ror:{sh} row_mask:0xf bank_mask:0xf")
        A(f"v_mov_b32 v{tmp}, v{r}", f"v_permlane16_swap_b32 v{r}, v{tmp}", f"v_add_f32 v{r}, v{r}, v{tmp}")
    A("v_add_f32 v13, v48, v49")
    for e in range(2, 16): A(f"v_add_f32 v13, v13, v{48+e}")
    red32(13, 14)
    A(f"v_mul_f32 v13, {fl(-1/512)}, v13")
    for e in range(16): A(f"v_add_f32 v{48+e}, v{48+e}, v13")
    A("v_mul_f32 v13, v48, v48")
    for e in range(1, 16): A(f"v_fmac_f32 v13, v{48+e}, v{48+e}")
    red32(13, 14)
    A(f"s_lshl_b32 s{t0}, s2, 3", f"s_lshl_b32 s{t1}, s{sW}, 1", f"s_add_u32 s{t0}, s{t0}, s{t1}", f"s_lshl_b32 s{t0}, s{t0}, 2",
      f"s_add_u32 s{t0}, s{t0}, {OFF['SSQ']}", f"v_lshrrev_b32 v12, 5, v{vLane}", f"v_lshl_add_u32 v12, v12, 2, s{t0}",
      "s_mov_b32 exec_lo, 1", "s_mov_b32 exec_hi, 1",
      f"global_store_dword v12, v13, s[{WS}:{WS+1}]",
      "s_mov_b64 exec, -1")
    A(f"s_cmp_eq_u32 s{sROLE}, 3", f"s_cbranch_scc1 {n}_end")
    for r in range(64): A(f"v_mov_b32 v{ACC+r}, 0")
    A("s_waitcnt lgkmcnt(0)", "s_barrier")
    vF0, vF1 = 10, 11
    def ffrag_addr(j):
        return [f"v_xor_b32 v{vF0}, {j << 12}, v{vX0}", f"v_xor_b32 v{vF1}, {j << 12}, v{vX1}"] if j else \
               [f"v_mov_b32 v{vF0}, v{vX0}", f"v_mov_b32 v{vF1}, v{vX1}"]
    def ffrag_reads(j):
        L = []
        if j % 2 == 0: L += ffrag_addr(j)
        b = FB[j & 1]
        for i in range(4):
            L.append(f"ds_read_b128 v[{b+4*i}:{b+4*i+3}], v{vF1 if i & 1 else vF0} offset:{512*(i >> 1) + 4096*(j & 1)}")
        return L
    def interleave(mf, other, start=1, every=1):
        out = []; o = list(other); k = 0
        for i, m in enumerate(mf):
            out.append(m)
            if i >= start - 1 and o and (i - start + 1) % every == 0:
                while o:
                    x = o.pop(0); out.append(x)
                    if x.startswith(("ds_", "global_", "s_waitcnt")): break
        return out + o
    NSTORE = 4
    A(f"s_cmp_eq_u32 s{sROLE}, 2", f"s_cbranch_scc1 {n}_loop_c")
    A(*ffrag_reads(0))
    for j in range(16):
        if j <= NR1 - 1: N = 4*(NR1-1-j) + NSTORE + 4*min(j, 16-NR1)
        else: N = 4*(15-j)
        A(f"s_waitcnt vmcnt({N}) lgkmcnt(0)")
        mf = []
        for nt in range(4):
            for mi in range(4):
                d = ACC + (mi*4 + nt)*4
                mf.append(f"{MF} v[{d}:{d+3}], a[{16*j+4*mi}:{16*j+4*mi+3}], v[{FB[j&1]+4*nt}:{FB[j&1]+4*nt+3}], v[{d}:{d+3}]")
        other = []
        if j < 15: other += ffrag_reads(j+1)
        if j < 16 - NR1: other += chunk_loads(NR1 + j)
        A(*interleave(mf, other))
    A(f"s_branch {n}_epi")
    A.label(f"{n}_loop_c")
    vWE, vWO = 12, 13; vTR = [14, 15, 16, 17]
    A(f"s_lshl_b32 s{t0}, s{sW}, 13", f"s_add_u32 s{t0}, s{t0}, 65536",
      f"v_lshrrev_b32 v18, 3, v{vLane}", f"v_lshlrev_b32 v18, 7, v18",
      f"v_bfe_u32 v19, v{vLane}, 1, 2", f"v_bfe_u32 v20, v{vLane}, 4, 1", f"v_xor_b32 v19, v19, v20",
      f"v_lshl_add_u32 v18, v19, 5, v18", f"v_and_b32 v19, 1, v{vLane}", f"v_lshl_add_u32 v18, v19, 4, v18",
      f"v_add_u32 v{vWE}, s{t0}, v18", f"v_xor_b32 v{vWO}, 64, v{vWE}",
      f"v_bfe_u32 v18, v{vLane}, 2, 2", f"v_lshl_add_u32 v19, v{vKq}, 3, v18", f"v_lshlrev_b32 v19, 7, v19",
      f"v_lshrrev_b32 v18, 1, v18", f"v_and_b32 v20, 1, v{vKq}", f"v_lshl_add_u32 v18, v20, 1, v18",
      f"v_lshl_add_u32 v19, v18, 5, v19", f"v_and_b32 v18, 3, v{vLane}", f"v_lshl_add_u32 v19, v18, 3, v19",
      f"v_add_u32 v{vTR[0]}, s{t0}, v19")
    for nt in range(1, 4): A(f"v_xor_b32 v{vTR[nt]}, {32*nt}, v{vTR[0]}")
    def stage_writes(j):
        return [f"ds_write_b128 v{vWO if pi & 1 else vWE}, a[{16*j+4*pi}:{16*j+4*pi+3}] offset:{(j&1)*4096 + pi*1024}" for pi in range(4)]
    def wfrag_reads(j):
        L = []
        b = WB[j & 1]
        for nt in range(4):
            for h in range(2):
                L.append(f"ds_read_b64_tr_b16 v[{b+4*nt+2*h}:{b+4*nt+2*h+1}], v{vTR[nt]} offset:{(j&1)*4096 + 512*h}")
        return L
    def Nc(jj, issued):
        return 4*(NR1-1-jj) + NSTORE + 4*issued if jj <= NR1-1 else 4*(15-jj)
    A(f"s_waitcnt vmcnt({Nc(0, 0)})", *stage_writes(0))
    A(f"s_waitcnt vmcnt({Nc(1, 0)})", *stage_writes(1))
    A(*wfrag_reads(0), *ffrag_reads(0))
    for j in range(16):
        A(f"s_waitcnt lgkmcnt({4 if 0 < j < 15 else 0})")
        mf = []
        for nt in range(4):
            for mi in range(4):
                d = ACC + (mi*4 + nt)*4
                mf.append(f"{MF} v[{d}:{d+3}], v[{FB[j&1]+4*mi}:{FB[j&1]+4*mi+3}], v[{WB[j&1]+4*nt}:{WB[j&1]+4*nt+3}], v[{d}:{d+3}]")
        other = []
        if j < 15: other += wfrag_reads(j+1) + ffrag_reads(j+1)
        if j < 16 - NR1: other += chunk_loads(NR1 + j)
        if j + 2 <= 15:
            other += [f"s_waitcnt vmcnt({Nc(j+2, min(j+1, 16-NR1))})"] + stage_writes(j+2)
        out = []; o = list(other)
        for i, m in enumerate(mf):
            out.append(m)
            take = (len(o) + (16 - i) - 1) // (16 - i) if i >= 0 else 0
            for _ in range(take):
                if o: out.append(o.pop(0))
        A(*out, *o)
    A.label(f"{n}_epi")
    A(f"v_add_u32 v10, s{sPS}, v{vOL}")
    A(f"s_mov_b32 s{t2}, s{sOB}", f"s_mov_b32 s{t3}, s{sOB+1}")
    PK = 16
    for nt in range(4):
        for p in range(2):
            r = PK + 4*((2*nt + p) % 4)
            d0 = ACC + ((2*p)*4 + nt)*4; d1 = ACC + ((2*p+1)*4 + nt)*4
            A(f"v_cvt_pk_bf16_f32 v{r}, v{d0}, v{d0+1}", f"v_cvt_pk_bf16_f32 v{r+1}, v{d0+2}, v{d0+3}",
              f"v_cvt_pk_bf16_f32 v{r+2}, v{d1}, v{d1+1}", f"v_cvt_pk_bf16_f32 v{r+3}, v{d1+2}, v{d1+3}",
              f"global_store_dwordx4 v{vOL if p == 0 else 10}, v[{r}:{r+3}], s[{t2}:{t3}]")
        if nt < 3: A(f"s_add_u32 s{t2}, s{t2}, s{sNTS}", f"s_addc_u32 s{t3}, s{t3}, 0")
    A(f"s_cmp_eq_u32 s{sROLE}, 1", f"s_cbranch_scc0 {n}_end")
    A(f"s_mov_b32 s{sROLE}, 0")
    sadd64(A, sOB, sOB, OFF["W2T"] - OFF["W2P"])
    ID = [64, 68]
    for par in range(2):
        A(f"v_lshlrev_b32 v12, 3, v{vKq}", f"v_sub_u32 v12, v{vRho}, v12")
        if par: A("v_add_u32 v12, 16, v12")
        A(f"v_and_b32 v13, 1, v12", f"v_lshlrev_b32 v13, 4, v13", f"v_mov_b32 v14, 0x3f80", f"v_lshlrev_b32 v13, v13, v14",
          f"v_ashrrev_i32 v12, 1, v12")
        for r in range(4):
            A(f"v_cmp_eq_u32 vcc, {r}, v12", f"v_cndmask_b32 v{ID[par]+r}, 0, v13, vcc")
    for nt in range(4):
        for mi in range(4):
            d = ACC + (mi*4 + nt)*4; j = nt >> 1
            A(f"{MF} v[{d}:{d+3}], a[{16*j+4*mi}:{16*j+4*mi+3}], v[{ID[nt&1]}:{ID[nt&1]+3}], 0")
    A(f"s_branch {n}_epi")
    A.label(f"{n}_end")
    A("s_endpgm")
    return dict(name="k1_kernel", lines=A.lines, vgpr=512, accum=256, sgpr=64, lds=65536 + 32768, grid=256, block=256)

def assemble(kernels, launches, path):
    hdr = open("cdna_kernels/" + NAME + ".s.ref").read().split("\n")
    out = [l for l in hdr if l.startswith(";") and "@launch" not in l and "Override" not in l and "grid=ceil" not in l and "v1 =" not in l][:11]
    byname = {k["name"]: k for k in kernels}
    for nm in launches:
        k = byname[nm]
        out.append(f"; @launch kernel={nm} grid=({k['grid']},1,1) block=({k['block']},1,1) lds={k['lds']}")
    out.append('.amdgcn_target "amdgcn-amd-amdhsa--gfx950"')
    out.append(".text")
    tot = 0
    for k in kernels:
        lines, nn = fix_hazards(k["lines"])
        tot += nn
        out += [f".globl {k['name']}", ".p2align 8", f".type {k['name']},@function", f"{k['name']}:"]
        out += [("    " + l if not l.endswith(":") else l) for l in lines]
    out.append('.section .rodata,"a"')
    for k in kernels:
        out += [".p2align 6", f".amdhsa_kernel {k['name']}",
                f"  .amdhsa_next_free_vgpr {k['vgpr']}", f"  .amdhsa_next_free_sgpr {k['sgpr']}",
                f"  .amdhsa_accum_offset {k['accum']}", "  .amdhsa_group_segment_fixed_size 0",
                "  .amdhsa_kernarg_size 80", "  .amdhsa_user_sgpr_count 2", "  .amdhsa_user_sgpr_kernarg_segment_ptr 1",
                "  .amdhsa_system_sgpr_workgroup_id_x 1", ".end_amdhsa_kernel"]
    open(path, "w").write("\n".join(out) + "\n")
    print(f"wrote {path}: {len(out)} lines, {tot} nop states inserted")

if __name__ == "__main__":
    ks = [gen_k1()]
    assemble(ks, ["k1_kernel"], sys.argv[1] if len(sys.argv) > 1 else "cur.s")
```

```python
from asmgen import *
from gen import *

def gen_down1(mode):
    A = Asm(); n = f"down{mode}"
    sW, sPT, sCT, t0, t1, t2 = 3, 24, 25, 26, 27, 28
    sA = [30, 32, 34, 36]; sB = [38, 40, 42, 44]; sR, sO = 46, 48
    vLane, vQ, vL, vO0, vO1, vR = 2, 3, 4, 5, 6, 7
    vWk = [None, 8, 9, 10]; vRd = 11
    RES = 16
    ACC = 64; RD = 128
    q4 = lambda b: f"v[{b}:{b+3}]"
    p2 = lambda b: f"v[{b}:{b+1}]"
    prologue(A, n, 256)
    TS = 56*1024
    A(f"v_lshrrev_b32 v1, 6, v0", f"v_and_b32 v{vLane}, 63, v0", f"v_readfirstlane_b32 s{sW}, v1",
      f"v_bfe_u32 v{vQ}, v0, 4, 2", f"v_and_b32 v{vL}, 15, v0",
      f"s_and_b32 s{t0}, s2, 7", f"s_lshl_b32 s{t0}, s{t0}, 2", f"s_lshr_b32 s{t1}, s2, 6", f"s_add_u32 s{sPT}, s{t0}, s{t1}",
      f"s_bfe_u32 s{sCT}, s2, 0x30003",
      f"s_mul_i32 s{t0}, s{sW}, {14*1024}", f"s_add_u32 s{t0}, s{t0}, 4096", f"v_lshl_add_u32 v{vO0}, v{vLane}, 4, s{t0}",
      f"v_add_u32 v{vO1}, 8192, v{vO0}",
      f"s_mul_i32 s{t0}, s{sPT}, {4*TS}", f"s_add_u32 s{t0}, s{t0}, {OFF['H']}",
      f"s_mul_i32 s{t1}, s{sCT}, {4*TS}", f"s_add_u32 s{t1}, s{t1}, {OFF['W2P'] if mode == 0 else OFF['W2T']}")
    tA, tB = (t0, t1) if mode == 0 else (t1, t0)
    if mode == 0:
        A(f"s_lshl_b32 s{t2}, s{sCT}, 2", f"s_add_u32 s{t2}, s{t2}, s{sW}", f"s_lshl_b32 s{t2}, s{t2}, 16",
          f"s_lshl_b32 s{sR}, s{sPT}, 7", f"s_add_u32 s{t2}, s{t2}, s{sR}",
          f"v_lshlrev_b32 v{vR}, 12, v{vL}", f"v_lshl_add_u32 v{vR}, v{vQ}, 5, v{vR}", f"v_add_u32 v{vR}, s{t2}, v{vR}")
    else:
        A(f"s_lshl_b32 s{t2}, s{sPT}, 2", f"s_add_u32 s{t2}, s{t2}, s{sW}", f"s_lshl_b32 s{t2}, s{t2}, 14",
          f"s_lshl_b32 s{sR}, s{sCT}, 7", f"s_add_u32 s{t2}, s{t2}, s{sR}",
          f"v_lshlrev_b32 v{vR}, 10, v{vL}", f"v_lshl_add_u32 v{vR}, v{vQ}, 5, v{vR}", f"v_add_u32 v{vR}, s{t2}, v{vR}")
    A("s_waitcnt lgkmcnt(0)")
    sadd64(A, sA[0], WS, f"s{tA}")
    sadd64(A, sR, WS, OFF["ZB"] if mode == 0 else OFF["X3"])
    A(f"global_load_dwordx4 {q4(RES)}, v{vR}, s[{sR}:{sR+1}]", f"global_load_dwordx4 {q4(RES+4)}, v{vR}, s[{sR}:{sR+1}] offset:16")
    for i in range(1, 4): sadd64(A, sA[i], sA[i-1], TS)
    for k in range(4):
        A(f"s_xor_b32 s{t2}, s{sW}, {k}", f"s_mul_i32 s{t2}, s{t2}, {TS}", f"s_add_u32 s{t2}, s{t2}, s{tB}")
        sadd64(A, sB[k], WS, f"s{t2}")
    def loads(kc):
        sl = kc % 8; v = vO0 if kc < 8 else vO1; off = (kc % 8)*1024 - 4096
        L = []
        order = [("B", 0), ("A", 0), ("A", 1), ("A", 2), ("A", 3), ("B", 1), ("B", 2), ("B", 3)]
        for t, i in order:
            r = 32*sl + (4*i if t == "A" else 16 + 4*i); s = (sA if t == "A" else sB)[i]
            L.append(f"global_load_dwordx4 a[{r}:{r+3}], v{v}, s[{s}:{s+1}] offset:{off}")
        return L
    for kc in range(7): A(*loads(kc))
    for k in range(1, 4):
        A(f"s_xor_b32 s{t2}, s{sW}, {k}", f"s_mul_i32 s{t2}, s{t2}, 3", f"s_add_u32 s{t2}, s{t2}, {k-1}", f"s_lshl_b32 s{t2}, s{t2}, 12",
          f"v_lshl_add_u32 v{vWk[k]}, v{vLane}, 4, s{t2}")
    A(f"s_mul_i32 s{t2}, s{sW}, {3*4096}", f"v_lshl_add_u32 v{vRd}, v{vLane}, 4, s{t2}")
    if mode == 1:
        A(f"s_bfe_u32 s{t2}, s{sPT}, 0x30001", f"s_lshl_b32 s{t2}, s{t2}, 8",
          f"s_lshl_b32 s{t0}, s{sW}, 1", f"s_add_u32 s{t2}, s{t2}, s{t0}",
          f"s_and_b32 s{t0}, s{sPT}, 1", f"s_lshl_b32 s{t0}, s{t0}, 3", f"s_add_u32 s{t2}, s{t2}, s{t0}",
          f"s_lshr_b32 s{t0}, s{sPT}, 4", f"s_lshl_b32 s{t0}, s{t0}, 4", f"s_add_u32 s{t2}, s{t2}, s{t0}",
          f"s_lshl_b32 s{t2}, s{t2}, 10", f"s_lshl_b32 s{t0}, s{sCT}, 7", f"s_add_u32 s{t2}, s{t2}, s{t0}",
          f"v_and_b32 v12, 7, v{vL}", f"v_lshlrev_b32 v12, 15, v12", f"v_lshrrev_b32 v13, 3, v{vL}", f"v_lshl_add_u32 v12, v13, 10, v12",
          f"v_lshl_add_u32 v12, v{vQ}, 5, v12", f"v_add_u32 v12, s{t2}, v12")
    for kc in range(14):
        sl = kc % 8
        N = 8*(min(13, kc+6) - kc)
        A(f"s_waitcnt vmcnt({N})")
        mf = []
        for k in range(4):
            for mi in range(4):
                d = ACC + (k*4 + mi)*4
                c = "0" if kc == 0 else q4(d)
                mf.append(f"{MF} {q4(d)}, a[{32*sl+4*mi}:{32*sl+4*mi+3}], a[{32*sl+16+4*k}:{32*sl+16+4*k+3}], {c}")
        ld = loads(kc+7) if kc + 7 <= 13 else []
        for i, m in enumerate(mf):
            A(m)
            if ld and i % 2 == 1: A(ld.pop(0))
    for k in range(1, 4):
        for mi in range(4):
            d = ACC + (k*4 + mi)*4
            A(f"ds_write_b128 v{vWk[k]}, {q4(d)} offset:{1024*mi}")
    U = 32
    for r in range(8): A(f"v_lshlrev_b32 v{U+2*r}, 16, v{RES+r}", f"v_and_b32 v{U+2*r+1}, 0xffff0000, v{RES+r}")
    A("s_waitcnt lgkmcnt(0)", "s_barrier")
    for k in range(3):
        for mi in range(4):
            r = RD + (k*4 + mi)*4
            A(f"ds_read_b128 {q4(r)}, v{vRd} offset:{4096*k + 1024*mi}")
    for k in range(3):
        A(f"s_waitcnt lgkmcnt({8 - 4*k})")
        for mi in range(4):
            d = ACC + 4*mi; r = RD + (k*4 + mi)*4
            for e in range(4): A(f"v_add_f32 v{d+e}, v{d+e}, v{r+e}")
    Rg = lambda m, jj: ACC + 4*m + jj
    for jj in range(4): A(f"v_permlane32_swap_b32 v{Rg(0,jj)}, v{Rg(2,jj)}", f"v_permlane32_swap_b32 v{Rg(1,jj)}, v{Rg(3,jj)}")
    for jj in range(4): A(f"v_permlane16_swap_b32 v{Rg(0,jj)}, v{Rg(1,jj)}", f"v_permlane16_swap_b32 v{Rg(2,jj)}, v{Rg(3,jj)}")
    for i in range(16): A(f"v_add_f32 v{ACC+i}, v{ACC+i}, v{U+i}")
    O = 48
    for r in range(8): A(f"v_cvt_pk_bf16_f32 v{O+r}, v{ACC+2*r}, v{ACC+2*r+1}")
    if mode == 0:
        sadd64(A, sO, WS, OFF["ZA"])
        A(f"global_store_dwordx4 v{vR}, {q4(O)}, s[{sO}:{sO+1}]", f"global_store_dwordx4 v{vR}, {q4(O+4)}, s[{sO}:{sO+1}] offset:16")
        SQ = 96
        for i in range(16): A(f"v_mul_f32 v{SQ+i}, v{ACC+i}, v{ACC+i}")
        A(f"s_lshl_b32 s{t0}, s{sCT}, 2", f"s_add_u32 s{t0}, s{t0}, s{sW}", f"s_cmp_eq_u32 s{t0}, 31", f"s_cbranch_scc0 {n}_nomask",
          f"v_cmp_eq_u32 vcc, 15, v{vL}")
        for i in range(16): A(f"v_cndmask_b32 v{SQ+i}, v{SQ+i}, 0, vcc" if False else f"v_cndmask_b32_e64 v{SQ+i}, v{SQ+i}, 0, vcc")
        A.label(f"{n}_nomask")
        D = lambda dst, src, ctrl, bm: f"v_add_f32_dpp v{dst}, v{src}, v{src} {ctrl} row_mask:0xf bank_mask:{bm}"
        for i in range(8): A(D(SQ+i, SQ+i, "row_mirror", "0x3"))
        for i in range(8): A(D(SQ+i, SQ+8+i, "row_mirror", "0xc"))
        for i in range(4): A(D(SQ+i, SQ+i, "row_half_mirror", "0x5"))
        for i in range(4): A(D(SQ+i, SQ+4+i, "row_half_mirror", "0xa"))
        for i in range(4): A(D(SQ+i, SQ+i, "quad_perm:[2,3,0,1]", "0xf"))
        for i in range(4): A(D(SQ+i, SQ+i, "quad_perm:[1,0,3,2]", "0xf"))
        A(f"v_and_b32 v12, 1, v0", f"v_cmp_eq_u32 vcc, 1, v12", f"v_cndmask_b32 v{SQ}, v{SQ}, v{SQ+1}, vcc", f"v_cndmask_b32 v{SQ+2}, v{SQ+2}, v{SQ+3}, vcc",
          f"v_and_b32 v12, 2, v0", f"v_cmp_eq_u32 vcc, 2, v12", f"v_cndmask_b32 v{SQ}, v{SQ}, v{SQ+2}, vcc",
          f"v_lshlrev_b32 v12, 2, v0", f"ds_write_b32 v12, v{SQ} offset:49152", "s_waitcnt lgkmcnt(0)", "s_barrier",
          f"s_cmp_eq_u32 s{sW}, 0", f"s_cbranch_scc0 {n}_end")
        for k in range(4): A(f"ds_read_b32 v{SQ+4+k}, v12 offset:{49152 + 256*k}")
        A(f"s_lshl_b32 s{t0}, s{sPT}, 8", f"s_add_u32 s{t0}, s{t0}, {OFF['SSQ']}", f"v_add_u32 v12, s{t0}, v12", "s_waitcnt lgkmcnt(0)",
          f"v_add_f32 v{SQ+4}, v{SQ+4}, v{SQ+5}", f"v_add_f32 v{SQ+6}, v{SQ+6}, v{SQ+7}", f"v_add_f32 v{SQ+4}, v{SQ+4}, v{SQ+6}",
          f"global_atomic_add_f32 v12, v{SQ+4}, s[{WS}:{WS+1}]")
    else:
        A(f"global_store_dwordx4 v12, {q4(O)}, s[{OUT}:{OUT+1}]", f"global_store_dwordx4 v12, {q4(O+4)}, s[{OUT}:{OUT+1}] offset:16")
    A.label(f"{n}_end")
    A("s_endpgm")
    return dict(name=f"down{mode}_kernel", lines=A.lines, vgpr=176 + 256, accum=176, sgpr=64, lds=49152 + 1024, grid=256, block=256)

def gen_down():
    return [gen_down1(0), gen_down1(1)]
```

```python
from asmgen import *
from gen import *

def weave(mf, fill, per=2, start=0):
    out = []; f = list(fill)
    for i, m in enumerate(mf):
        out.append(m)
        if i >= start:
            for _ in range(per):
                if f: out.append(f.pop(0))
    return out + f

def gen_fft():
    A = Asm(); n = "fft"
    sW, sZ, sO, sSS, sWF, t0, t1 = 3, 24, 26, 28, 30, 32, 33
    vLane, vQ, vL = 2, 3, 4
    vZ, vS, vW, vR, vLA, vT0, vT1 = 5, 6, 7, 8, 9, 10, 11
    vTR = [12, 13, 14, 15]
    vM = 16
    ZR, ZI, SSQ, WF, RES = 20, 24, 28, 36, 44
    C64, S64, N64 = [52, 64], [56, 68], [60, 72]
    C32, S32, N32 = [76, 80], [84, 88], [92, 96]
    TC, TS = 100, 108
    AF = 116
    ACR, ACI = [148, 152], [156, 160]
    BR, BI = 164, 168
    XR, XI = [172, 176], [180, 184]
    WRu, WIu = 188, 196
    YR, YI = 204, 208
    OR_, OI = [212, 216], [220, 224]
    TMP = 228
    KC = 18
    prologue(A, n, 256)
    A(f"v_lshrrev_b32 v1, 6, v0", f"v_and_b32 v{vLane}, 63, v0", f"v_readfirstlane_b32 s{sW}, v1",
      f"v_bfe_u32 v{vQ}, v0, 4, 2", f"v_and_b32 v{vL}, 15, v0",
      f"v_lshlrev_b32 v{vZ}, 4, v0", f"v_lshlrev_b32 v{vS}, 5, v0",
      f"v_lshl_add_u32 v17, v1, 4, v{vL}", f"v_lshlrev_b32 v{vW}, 7, v17", f"v_lshl_add_u32 v{vW}, v{vQ}, 5, v{vW}",
      f"v_and_b32 v18, 1, v{vQ}", f"v_lshlrev_b32 v18, 3, v18", f"v_lshl_add_u32 v{vR}, v{vL}, 4, v18",
      f"v_lshrrev_b32 v18, 1, v{vQ}", f"v_lshl_add_u32 v{vR}, v18, 8, v{vR}",
      f"v_and_b32 v18, 1, v1", f"v_lshl_add_u32 v{vR}, v18, 9, v{vR}",
      f"v_lshrrev_b32 v18, 1, v1", f"v_lshl_add_u32 v{vR}, v18, 10, v{vR}",
      f"s_lshl_b32 s{t0}, s2, 13",
      "s_waitcnt lgkmcnt(0)")
    A(f"s_add_u32 s{t1}, s{t0}, {OFF['ZA'] + 4096}"); sadd64(A, sZ, WS, f"s{t1}")
    sadd64(A, sSS, WS, OFF["SSQ"])
    A(f"global_load_dwordx4 v[{SSQ}:{SSQ+3}], v{vS}, s[{sSS}:{sSS+1}]",
      f"global_load_dwordx4 v[{SSQ+4}:{SSQ+7}], v{vS}, s[{sSS}:{sSS+1}] offset:16",
      f"global_load_dwordx4 v[{ZR}:{ZR+3}], v{vZ}, s[{sZ}:{sZ+1}] offset:-4096",
      f"global_load_dwordx4 v[{ZI}:{ZI+3}], v{vZ}, s[{sZ}:{sZ+1}]")
    A(f"s_add_u32 s{t1}, s{t0}, {OFF['WF']}"); sadd64(A, sWF, WS, f"s{t1}")
    A(f"global_load_dwordx4 v[{WF}:{WF+3}], v{vW}, s[{sWF}:{sWF+1}]",
      f"global_load_dwordx4 v[{WF+4}:{WF+7}], v{vW}, s[{sWF}:{sWF+1}] offset:16")
    for pl in range(2):
        for nt in range(2):
            r = RES + 4*pl + 2*nt
            A(f"global_load_dwordx2 v[{r}:{r+1}], v{vR}, s[{sZ}:{sZ+1}] offset:{-4096 + 4096*pl + 2048*nt}")
    sadd64(A, sO, sZ, OFF["ZB"] - OFF["ZA"])
    A(f"v_bfe_i32 v{vM}, v0, 0, 1", f"v_and_b32 v{vM}, 0x80008000, v{vM}",
      f"v_cvt_f32_u32 v17, v17",
      f"v_cvt_f32_u32 v19, v{vQ}")
    T = AF
    A(f"v_mul_f32 v18, {fl(1/64)}, v17", f"v_mul_f32 v{T}, {fl(8.0)}, v19", f"v_mul_f32 v{T}, v{T}, v18")
    for e in range(1, 8): A(f"v_add_f32 v{T+e}, v{T+e-1}, v18")
    for e in range(8): A(f"v_cos_f32 v{T+8+e}, v{T+e}", f"v_sin_f32 v{T+16+e}, v{T+e}")
    for r in range(4):
        A(f"v_cvt_pk_bf16_f32 v{C64[0]+r}, v{T+8+2*r}, v{T+9+2*r}", f"v_cvt_pk_bf16_f32 v{S64[0]+r}, v{T+16+2*r}, v{T+17+2*r}")
    for r in range(4):
        A(f"v_xor_b32 v{N64[0]+r}, 0x80008000, v{S64[0]+r}", f"v_xor_b32 v{C64[1]+r}, v{vM}, v{C64[0]+r}",
          f"v_xor_b32 v{S64[1]+r}, v{vM}, v{S64[0]+r}")
    for r in range(4): A(f"v_xor_b32 v{N64[1]+r}, v{vM}, v{N64[0]+r}")
    A(f"v_mul_f32 v18, {fl(1/2048)}, v17", f"v_mul_f32 v{T}, {fl(4.0)}, v19", f"v_mul_f32 v{T}, v{T}, v18")
    for i in range(1, 8):
        mt, jj = i >> 2, i & 3
        if i == 4: A(f"v_fma_f32 v{T+4}, v18, {fl(16.0)[0:0] or 'v' + str(T+8)}, v{T}" if False else f"v_mul_f32 v{T+8}, {fl(16.0)}, v18", f"v_add_f32 v{T+4}, v{T}, v{T+8}")
        else: A(f"v_add_f32 v{T+i}, v{T+i-1}, v18")
    for i in range(8): A(f"v_cos_f32 v{TC+i}, v{T+i}", f"v_sin_f32 v{TS+i}, v{T+i}")
    A(f"v_cvt_f32_u32 v18, v{vL}", f"v_mul_f32 v18, {fl(1/32)}, v18", f"v_mul_f32 v{T}, {fl(4.0)}, v19", f"v_mul_f32 v{T}, v{T}, v18")
    for e in range(1, 4): A(f"v_add_f32 v{T+e}, v{T+e-1}, v18")
    for e in range(4): A(f"v_cos_f32 v{T+8+e}, v{T+e}", f"v_sin_f32 v{T+16+e}, v{T+e}")
    for r in range(2):
        A(f"v_cvt_pk_bf16_f32 v{C32[0]+r}, v{T+8+2*r}, v{T+9+2*r}", f"v_cvt_pk_bf16_f32 v{S32[0]+r}, v{T+16+2*r}, v{T+17+2*r}")
    for r in range(2):
        A(f"v_xor_b32 v{C32[0]+2+r}, v{vM}, v{C32[0]+r}", f"v_xor_b32 v{S32[0]+2+r}, v{vM}, v{S32[0]+r}")
    for r in range(4):
        A(f"v_xor_b32 v{C32[1]+r}, 0x80000000, v{C32[0]+r}", f"v_xor_b32 v{S32[1]+r}, 0x80000000, v{S32[0]+r}",
          f"v_xor_b32 v{N32[0]+r}, 0x80008000, v{S32[0]+r}")
    for r in range(4): A(f"v_xor_b32 v{N32[1]+r}, 0x80000000, v{N32[0]+r}")
    A(f"v_lshlrev_b32 v{vLA}, 4, v{vLane}",
      f"v_lshl_add_u32 v17, v1, 4, v{vL}", f"v_bfe_u32 v18, v17, 1, 3", f"v_xor_b32 v18, v18, v{vQ}",
      f"v_lshlrev_b32 v18, 3, v18", f"v_lshl_add_u32 v{vT0}, v17, 6, v18", f"v_add_u32 v{vT0}, 8192, v{vT0}",
      f"v_xor_b32 v{vT1}, 32, v{vT0}",
      f"v_bfe_u32 v17, v0, 2, 2", f"v_and_b32 v18, 3, v0",
      f"v_lshl_add_u32 v19, v{vQ}, 3, v17", f"v_lshlrev_b32 v19, 6, v19",
      f"v_lshrrev_b32 v17, 1, v17", f"v_xor_b32 v18, v18, v17",
      f"v_and_b32 v17, 1, v{vQ}", f"v_lshlrev_b32 v17, 2, v17", f"v_xor_b32 v18, v18, v17",
      f"v_lshl_add_u32 v19, v18, 3, v19", f"v_add_u32 v{vTR[0]}, 8192, v19",
      f"v_xor_b32 v{vTR[1]}, {256 + 16}, v{vTR[0]}", f"v_xor_b32 v{vTR[2]}, 32, v{vTR[0]}", f"v_xor_b32 v{vTR[3]}, 32, v{vTR[1]}",
      f"v_mov_b32 v{KC}, {fl(8192.0)}", f"v_mov_b32 v{KC+1}, {fl(1e-5 * 2**22)}")
    A("s_waitcnt vmcnt(8)")
    RS = TMP
    for r in range(4):
        A(f"v_pk_fma_f32 v[{RS+2*r}:{RS+2*r+1}], v[{SSQ+2*r}:{SSQ+2*r+1}], v[{KC}:{KC+1}], v[{KC}:{KC+1}] op_sel:[0,0,1] op_sel_hi:[1,0,1]")
    for e in range(8): A(f"v_rsq_f32 v{RS+e}, v{RS+e}")
    A("s_waitcnt vmcnt(6)", "s_cmp_eq_u32 s2, 255", f"s_cbranch_scc0 {n}_nz")
    for r in range(4): A(f"v_mov_b32 v{ZI+r}, 0")
    A.label(f"{n}_nz")
    for pl, Z in enumerate((ZR, ZI)):
        U = AF + 8*pl
        for r in range(4): A(f"v_lshlrev_b32 v{U+2*r}, 16, v{Z+r}", f"v_and_b32 v{U+2*r+1}, 0xffff0000, v{Z+r}")
        for r in range(4): A(f"v_pk_mul_f32 v[{U+2*r}:{U+2*r+1}], v[{U+2*r}:{U+2*r+1}], v[{RS+2*r}:{RS+2*r+1}]")
        for r in range(4): A(f"v_cvt_pk_bf16_f32 v{Z+r}, v{U+2*r}, v{U+2*r+1}")
        A(f"ds_write_b128 v{vZ}, v[{Z}:{Z+3}] offset:{4096*pl}")
    A("s_waitcnt lgkmcnt(0)", "s_barrier")
    def af(pl, mt, ks): return AF + 4*(4*mt + 2*ks + pl)
    for mt in range(2):
        for ks in range(2):
            for pl in range(2):
                r = af(pl, mt, ks)
                A(f"ds_read_b128 v[{r}:{r+3}], v{vLA} offset:{4096*pl + 1024*ks + 2048*mt}")
    def q4(b): return f"v[{b}:{b+3}]"
    def p2(b): return f"v[{b}:{b+1}]"
    def s1(mt):
        L = []
        for ks in range(2):
            c0 = lambda d: "0" if ks == 0 else q4(d)
            L += [f"{MF} {q4(ACR[mt])}, {q4(af(0,mt,ks))}, {q4(C64[ks])}, {c0(ACR[mt])}",
                  f"{MF} {q4(ACI[mt])}, {q4(af(1,mt,ks))}, {q4(C64[ks])}, {c0(ACI[mt])}",
                  f"{MF} {q4(ACR[mt])}, {q4(af(1,mt,ks))}, {q4(S64[ks])}, {q4(ACR[mt])}",
                  f"{MF} {q4(ACI[mt])}, {q4(af(0,mt,ks))}, {q4(N64[ks])}, {q4(ACI[mt])}"]
        return L
    def unpack(dst, src, nreg):
        L = []
        for r in range(nreg): L += [f"v_lshlrev_b32 v{dst+2*r}, 16, v{src+r}", f"v_and_b32 v{dst+2*r+1}, 0xffff0000, v{src+r}"]
        return L
    def cmul(dr, di, c, s, conj, outr, outi, tmp):
        L = []
        for p in range(2):
            a, b, cc, ss = dr+2*p, di+2*p, c+2*p, s+2*p
            t = tmp + 8*p
            L += [f"v_pk_mul_f32 {p2(t)}, {p2(b)}, {p2(ss)}", f"v_pk_mul_f32 {p2(t+2)}, {p2(a)}, {p2(ss)}"]
            if not conj:
                L += [f"v_pk_fma_f32 {p2(t+4)}, {p2(a)}, {p2(cc)}, {p2(t)}",
                      f"v_pk_fma_f32 {p2(t+6)}, {p2(b)}, {p2(cc)}, {p2(t+2)} neg_lo:[0,0,1] neg_hi:[0,0,1]"]
            else:
                L += [f"v_pk_fma_f32 {p2(t+4)}, {p2(a)}, {p2(cc)}, {p2(t)} neg_lo:[0,0,1] neg_hi:[0,0,1]",
                      f"v_pk_fma_f32 {p2(t+6)}, {p2(b)}, {p2(cc)}, {p2(t+2)}"]
        for p in range(2):
            t = tmp + 8*p
            L += [f"v_cvt_pk_bf16_f32 v{outr+p}, v{t+4}, v{t+5}", f"v_cvt_pk_bf16_f32 v{outi+p}, v{t+6}, v{t+7}"]
        return L
    TA, TB = TMP, AF
    TMP2 = 188 + 16 + 40
    TMP2 = 244 - 16
    m0 = s1(0); m1 = s1(1)
    A("s_waitcnt lgkmcnt(6)", *m0[:4], "s_waitcnt lgkmcnt(4)", *m0[4:])
    fill = ["s_waitcnt vmcnt(4)"] + unpack(WRu, WF, 4)[:5] + cmul(ACR[0], ACI[0], TC, TS, False, BR, BI, TMP)
    A("s_waitcnt lgkmcnt(2)", *weave(m1[:4], fill[:6 + 2], per=2), "s_waitcnt lgkmcnt(0)", *weave(m1[4:], fill[8:], per=2))
    rest = unpack(WRu, WF, 4)[5:] + unpack(WIu, WF+4, 4)
    A(*rest[:8])
    A(*cmul(ACR[1], ACI[1], TC+4, TS+4, False, BR+2, BI+2, TMP))
    def s2(mt):
        return [f"{MF} {q4(XR[mt])}, {q4(C32[mt])}, {q4(BR)}, 0", f"{MF} {q4(XI[mt])}, {q4(C32[mt])}, {q4(BI)}, 0",
                f"{MF} {q4(XR[mt])}, {q4(S32[mt])}, {q4(BI)}, {q4(XR[mt])}", f"{MF} {q4(XI[mt])}, {q4(N32[mt])}, {q4(BR)}, {q4(XI[mt])}"]
    A(*weave(s2(0), rest[8:], per=2))
    ru = ["s_waitcnt vmcnt(0)"]
    for pl in range(2):
        for nt in range(2):
            ru += unpack((OR_, OI)[pl][nt], RES + 4*pl + 2*nt, 2)
    A(*weave(s2(1), ru[:9], per=2))
    A(*ru[9:13])
    A(*cmul(XR[0], XI[0], WRu, WIu, True, YR, YI, TMP))
    A(*cmul(XR[1], XI[1], WRu+4, WIu+4, True, YR+2, YI+2, TMP))
    def s3(mt):
        return [f"{MF} {q4(ACR[mt])}, {q4(C32[mt])}, {q4(YR)}, 0", f"{MF} {q4(ACI[mt])}, {q4(C32[mt])}, {q4(YI)}, 0",
                f"{MF} {q4(ACR[mt])}, {q4(N32[mt])}, {q4(YI)}, {q4(ACR[mt])}", f"{MF} {q4(ACI[mt])}, {q4(S32[mt])}, {q4(YR)}, {q4(ACI[mt])}"]
    A(*s3(0))
    A(*weave(s3(1), ru[13:], per=2))
    for mt in range(2):
        ur, ui = BR + 2*mt, BI + 2*mt
        A(*cmul(ACR[mt], ACI[mt], TC+4*mt, TS+4*mt, True, ur, ui, TMP))
        va = vT1 if mt else vT0
        A(f"ds_write_b64 v{va}, {p2(ur)}", f"ds_write_b64 v{va}, {p2(ui)} offset:4096")
    A("s_waitcnt lgkmcnt(0)", "s_barrier")
    def bf(pl, nt, ks): return AF + 4*(4*nt + 2*ks + pl)
    def trreads(nt, ks):
        L = []
        for pl in range(2):
            for h in range(2):
                r = bf(pl, nt, ks) + 2*h
                L.append(f"ds_read_b64_tr_b16 {p2(r)}, v{vTR[2*nt+h]} offset:{4096*pl + 2048*ks}")
        return L
    A(*trreads(0, 0), *trreads(0, 1), *trreads(1, 0))
    def fin(pl, nt, ks):
        if pl == 0:
            return [f"{MF} {q4(OR_[nt])}, {q4(C64[ks])}, {q4(bf(0,nt,ks))}, {q4(OR_[nt])}",
                    f"{MF} {q4(OR_[nt])}, {q4(N64[ks])}, {q4(bf(1,nt,ks))}, {q4(OR_[nt])}"]
        return [f"{MF} {q4(OI[nt])}, {q4(C64[ks])}, {q4(bf(1,nt,ks))}, {q4(OI[nt])}",
                f"{MF} {q4(OI[nt])}, {q4(S64[ks])}, {q4(bf(0,nt,ks))}, {q4(OI[nt])}"]
    A("s_cmp_eq_u32 s2, 255", f"s_cbranch_scc1 {n}_last")
    A("s_waitcnt lgkmcnt(8)", *weave(fin(0, 0, 0) + fin(1, 0, 0), trreads(1, 1), per=1))
    A("s_waitcnt lgkmcnt(8)", *fin(0, 0, 1), *fin(1, 0, 1))
    A("s_waitcnt lgkmcnt(4)", *fin(0, 1, 0), *fin(1, 1, 0))
    A("s_waitcnt lgkmcnt(0)", *fin(0, 1, 1), *fin(1, 1, 1))
    A(f"s_branch {n}_out")
    A.label(f"{n}_last")
    A("s_waitcnt lgkmcnt(8)", *trreads(1, 1), "s_waitcnt lgkmcnt(0)")
    for nt in range(2):
        for ks in range(2): A(*fin(0, nt, ks))
    A.label(f"{n}_out")
    for nt in range(2):
        for pl in range(2):
            o = (OR_, OI)[pl][nt]; r = TMP + 2*(2*nt + pl)
            A(f"v_cvt_pk_bf16_f32 v{r}, v{o}, v{o+1}", f"v_cvt_pk_bf16_f32 v{r+1}, v{o+2}, v{o+3}",
              f"global_store_dwordx2 v{vR}, {p2(r)}, s[{sO}:{sO+1}] offset:{-4096 + 4096*pl + 2048*nt}")
    A.label(f"{n}_end")
    A("s_endpgm")
    return dict(name="fft_kernel", lines=A.lines, vgpr=248, accum=248, sgpr=64, lds=16384, grid=256, block=256)
```

```python
from asmgen import *
from gen import *

def gen_glu(R=4):
    A = Asm(); n = "glu"
    sW, sPH, sWFv, sRT, sJ = 3, 24, 25, 26, 27
    sZ, sWp, sMZ, sMW, t0, t1, sHO = 28, 30, 32, 33, 34, 35, 36
    vLane, vQ, vL, vZo, vWo, vA = 2, 3, 4, 5, 6, 7
    vB = [8, 9, 10, 11]
    vSS, vMask = 12, 13
    AFR, BFR, ACC = [64, 80], [96, 112], 128
    ZS = lambda s: (s % R) * 8192
    WB = R * 8192
    WSL = lambda s: (s % R) * 16384
    STAT = WB + R * 16384
    q4 = lambda b: f"v[{b}:{b+3}]"
    p2 = lambda b: f"v[{b}:{b+1}]"
    prologue(A, n, 256)
    A(f"v_lshrrev_b32 v1, 6, v0", f"v_and_b32 v{vLane}, 63, v0", f"v_readfirstlane_b32 s{sW}, v1",
      f"v_bfe_u32 v{vQ}, v0, 4, 2", f"v_and_b32 v{vL}, 15, v0",
      f"s_and_b32 s{t0}, s2, 1", f"s_lshl_b32 s{t0}, s{t0}, 3", f"s_bfe_u32 s{t1}, s2, 0x30003", f"s_add_u32 s{sRT}, s{t0}, s{t1}",
      f"s_bfe_u32 s{t0}, s2, 0x20001", f"s_lshl_b32 s{t0}, s{t0}, 2", f"s_lshr_b32 s{t1}, s2, 6", f"s_add_u32 s{sJ}, s{t0}, s{t1}",
      f"s_lshr_b32 s{sPH}, s{sW}, 2", f"s_and_b32 s{sWFv}, s{sW}, 3",
      f"s_bfe_u32 s{t0}, s{sW}, 0x10001", f"s_lshl_b32 s{t0}, s{t0}, 2",
      f"v_or_b32 v14, s{t0}, v{vQ}", f"v_lshlrev_b32 v14, 1, v14", f"v_xor_b32 v14, v14, v{vL}", f"v_lshlrev_b32 v14, 4, v14",
      f"s_lshl_b32 s{t0}, s{sW}, 2", f"v_add_u32 v15, s{t0}, v{vQ}", f"v_lshl_add_u32 v{vZo}, v15, 12, v14",
      f"v_lshlrev_b32 v{vWo}, 4, v{vLane}",
      f"s_lshl_b32 s{sMZ}, s{sW}, 10", f"s_lshl_b32 s{sMW}, s{sW}, 11", f"s_add_u32 s{sMW}, s{sMW}, {WB}",
      f"s_lshl_b32 s{t0}, s{sRT}, 8", f"s_add_u32 s{t0}, s{t0}, {OFF['ZB']}",
      f"s_lshl_b32 s{t1}, s{sJ}, 18", f"s_add_u32 s{t1}, s{t1}, {OFF['W13']}", f"s_lshl_b32 s{sHO}, s{sW}, 11", f"s_add_u32 s{t1}, s{t1}, s{sHO}",
      "s_waitcnt lgkmcnt(0)")
    sadd64(A, sZ, WS, f"s{t0}"); sadd64(A, sWp, WS, f"s{t1}")
    def dma(s):
        return [f"s_add_u32 m0, s{sMZ}, {ZS(s)}", "DMAZ", f"s_add_u32 m0, s{sMW}, {WSL(s)}", "DMAW0", "DMAW1",
                f"s_add_u32 s{sZ}, s{sZ}, 131072", f"s_addc_u32 s{sZ+1}, s{sZ+1}, 0",
                f"s_add_u32 s{sWp}, s{sWp}, 16384", f"s_addc_u32 s{sWp+1}, s{sWp+1}, 0"]
    def fixdma(L):
        m = {"DMAZ": f"global_load_lds_dwordx4 v{vZo}, s[{sZ}:{sZ+1}]",
             "DMAW0": f"global_load_lds_dwordx4 v{vWo}, s[{sWp}:{sWp+1}]",
             "DMAW1": f"global_load_lds_dwordx4 v{vWo}, s[{sWp}:{sWp+1}] offset:1024"}
        return [m.get(x, x) for x in L]
    for s in range(R): A(*fixdma(dma(s)))
    A(f"s_lshl_b32 s{t0}, s{sWFv}, 12", f"s_add_u32 s{t0}, s{t0}, {WB}", f"v_add_u32 v{vA}, s{t0}, v{vWo}",
      f"v_bfe_u32 v14, v0, 2, 2", f"v_lshl_add_u32 v15, v{vQ}, 3, v14", f"v_lshlrev_b32 v15, 8, v15",
      f"v_and_b32 v16, 1, v{vQ}", f"v_lshl_add_u32 v14, v16, 2, v14",
      f"s_lshl_b32 s{t0}, s{sPH}, 2", f"s_add_u32 s{t0}, s{t0}, s{sWFv}", f"v_xor_b32 v14, s{t0}, v14",
      f"v_lshl_add_u32 v15, v14, 5, v15", f"v_and_b32 v14, 3, v0", f"v_lshl_add_u32 v{vB[0]}, v14, 3, v15")
    for k in range(1, 4): A(f"v_xor_b32 v{vB[k]}, {32*k}, v{vB[0]}")
    A(f"v_mov_b32 v{vSS}, 0", f"v_cmp_eq_u32 vcc, 3, v{vQ}", f"v_mov_b32 v14, 0xffff", f"v_cndmask_b32 v{vMask}, -1, v14, vcc")
    for r in range(64): A(f"v_mov_b32 v{ACC+r}, 0")
    def reads(s):
        a, b = AFR[s & 1], BFR[s & 1]
        L = []
        L += [f"ds_read_b64_tr_b16 {p2(b+2*h)}, v{vB[0]} offset:{ZS(s) + 1024*h}" for h in range(2)]
        L += [f"ds_read_b128 {q4(a+4*t)}, v{vA} offset:{WSL(s) + 1024*t}" for t in range(4)]
        for k in range(1, 4):
            L += [f"ds_read_b64_tr_b16 {p2(b+4*k+2*h)}, v{vB[k]} offset:{ZS(s) + 1024*h}" for h in range(2)]
        return L
    A(f"s_waitcnt vmcnt({3*(R-1)})", "s_barrier", *reads(0))
    for s in range(16):
        a, b = AFR[s & 1], BFR[s & 1]
        mf = []
        for k in range(4):
            for t in range(4):
                d = ACC + (t*4 + k)*4
                mf.append(f"{MF} {q4(d)}, {q4(a+4*t)}, {q4(b+4*k)}, {q4(d)}")
        A("s_waitcnt lgkmcnt(0)", *mf[:3])
        if s < 15:
            A(f"s_waitcnt vmcnt({3*(min(15, s+R-1) - (s+1))})", "s_barrier")
        other = []
        if s < 15: other += reads(s+1)
        st = [f"v_dot2_f32_bf16 v{vSS}, v{b+r}, v{b+r}, v{vSS}" for r in range(4)]
        if s == 15: st = st[:3] + [f"v_and_b32 v14, v{vMask}, v{b+3}", f"v_dot2_f32_bf16 v{vSS}, v14, v14, v{vSS}"]
        dm = fixdma(dma(s + R)) if s + R <= 15 else []
        seq = []
        rd = list(other); dd = list(dm); ss = list(st)
        slots = 13
        for i in range(slots):
            grp = []
            if rd: grp.append(rd.pop(0))
            if i % 3 == 1 and ss: grp.append(ss.pop(0))
            if i in (2, 6, 9):
                while dd:
                    x = dd.pop(0); grp.append(x)
                    if x.startswith("global_load_lds"): break
            seq.append(grp)
        seq[-1] += rd + ss + dd
        for i, m in enumerate(mf[3:]):
            A(m, *seq[i])
    A(f"s_cmp_ge_u32 s{sJ}, 14", f"s_cbranch_scc1 {n}_x3")
    A(f"v_mov_b32 v14, v{vSS}", f"v_permlane32_swap_b32 v{vSS}, v14", f"v_add_f32 v{vSS}, v{vSS}, v14",
      f"v_mov_b32 v14, v{vSS}", f"v_permlane16_swap_b32 v{vSS}, v14", f"v_add_f32 v{vSS}, v{vSS}, v14",
      f"s_lshl_b32 s{t0}, s{sPH}, 2", f"s_add_u32 s{t0}, s{t0}, s{sWFv}", f"s_lshl_b32 s{t0}, s{t0}, 6", f"s_add_u32 s{t0}, s{t0}, {STAT}",
      f"v_lshl_add_u32 v15, v{vL}, 2, s{t0}",
      f"ds_write_b32 v15, v{vSS}", "s_waitcnt lgkmcnt(0)", "s_barrier")
    IR2, KR = 16, 24
    for k in range(4):
        A(f"v_xor_b32 v14, {64*k}, v15", f"ds_read_b32 v{IR2+2*k}, v14")
    A(f"s_lshl_b32 s{t0}, s{sRT}, 3", f"s_lshl_b32 s{t1}, s{sPH}, 2", f"s_add_u32 s{t0}, s{t0}, s{t1}", f"s_add_u32 s{t0}, s{t0}, s{sWFv}",
      f"s_lshl_b32 s{t1}, s{sJ}, 2", f"s_add_u32 s{t1}, s{t1}, s{sWFv}", f"s_lshl_b32 s{t1}, s{t1}, 10", f"s_add_u32 s{t1}, s{t1}, {OFF['H']}")
    sHk = [40, 41, 42, 43]
    for k in range(4):
        A(f"s_xor_b32 s{sHk[k]}, s{t0}, {k}", f"s_mul_i32 s{sHk[k]}, s{sHk[k]}, {56*1024}", f"s_add_u32 s{sHk[k]}, s{sHk[k]}, s{t1}")
    A(f"v_mov_b32 v32, {fl(1/512)}", f"v_mov_b32 v33, {fl(1e-5)}", "s_waitcnt lgkmcnt(0)")
    for k in range(4):
        A(f"v_fma_f32 v{IR2+2*k}, v{IR2+2*k}, v32, v33")
    for k in range(4):
        A(f"v_rsq_f32 v{KR+2*k}, v{IR2+2*k}")
    for k in range(4):
        A(f"v_mul_f32 v{KR+2*k}, {fl(-1.4426950408889634)}, v{KR+2*k}")
    TM = 192
    for k in range(4):
        T = TM + 16*(k & 1); O = 40 + 4*k
        prs = [(i, p) for i in range(2) for p in range(2)]
        g = lambda i, p: ACC + ((2*i)*4 + k)*4 + 2*p
        u = lambda i, p: ACC + ((2*i+1)*4 + k)*4 + 2*p
        for x, (i, p) in enumerate(prs):
            A(f"v_pk_mul_f32 {p2(T+2*x)}, {p2(g(i,p))}, {p2(KR+2*k)} op_sel_hi:[1,0]")
        for x in range(4):
            A(f"v_exp_f32 v{T+2*x}, v{T+2*x}", f"v_exp_f32 v{T+2*x+1}, v{T+2*x+1}")
        for x, (i, p) in enumerate(prs):
            A(f"v_pk_mul_f32 {p2(T+8+2*x)}, {p2(g(i,p))}, {p2(u(i,p))}")
        for x in range(4):
            A(f"v_pk_fma_f32 {p2(T+2*x)}, {p2(T+2*x)}, {p2(IR2+2*k)}, {p2(IR2+2*k)} op_sel_hi:[1,0,0]")
        for x in range(4):
            A(f"v_rcp_f32 v{T+2*x}, v{T+2*x}", f"v_rcp_f32 v{T+2*x+1}, v{T+2*x+1}")
        for x in range(4):
            A(f"v_pk_mul_f32 {p2(T+8+2*x)}, {p2(T+8+2*x)}, {p2(T+2*x)}")
        for x in range(4):
            A(f"v_cvt_pk_bf16_f32 v{O+x}, v{T+8+2*x}, v{T+9+2*x}")
        A(f"v_add_u32 v14, s{sHk[k]}, v{vWo}", f"global_store_dwordx4 v14, {q4(O)}, s[{WS}:{WS+1}]")
    A(f"s_branch {n}_fin")
    A.label(f"{n}_x3")
    A(f"s_lshl_b32 s{t0}, s{sRT}, 3", f"s_lshl_b32 s{t1}, s{sPH}, 2", f"s_add_u32 s{t0}, s{t0}, s{t1}", f"s_add_u32 s{t0}, s{t0}, s{sWFv}",
      f"s_sub_u32 s{t1}, s{sJ}, 14", f"s_lshl_b32 s{t1}, s{t1}, 9", f"s_lshl_b32 s{sHO}, s{sWFv}, 7", f"s_add_u32 s{t1}, s{t1}, s{sHO}",
      f"s_add_u32 s{t1}, s{t1}, {OFF['X3']}",
      f"v_lshlrev_b32 v15, 10, v{vL}", f"v_lshl_add_u32 v15, v{vQ}, 4, v15")
    for k in range(4):
        A(f"s_xor_b32 s{sHO}, s{t0}, {k}", f"s_lshl_b32 s{sHO}, s{sHO}, 14", f"s_add_u32 s{sHO}, s{sHO}, s{t1}", f"v_add_u32 v14, s{sHO}, v15")
        for p in range(2):
            O = 40 + 8*(k & 1) + 4*p
            d0 = ACC + ((2*p)*4 + k)*4; d1 = ACC + ((2*p+1)*4 + k)*4
            A(f"v_cvt_pk_bf16_f32 v{O}, v{d0}, v{d0+1}", f"v_cvt_pk_bf16_f32 v{O+1}, v{d0+2}, v{d0+3}",
              f"v_cvt_pk_bf16_f32 v{O+2}, v{d1}, v{d1+1}", f"v_cvt_pk_bf16_f32 v{O+3}, v{d1+2}, v{d1+3}",
              f"global_store_dwordx4 v14, {q4(O)}, s[{WS}:{WS+1}] offset:{64*p}")
    A.label(f"{n}_fin")
    A(f"s_lshl_b32 s{t0}, s2, 5", f"s_add_u32 s{t0}, s{t0}, {OFF['SSQ']}", f"v_lshl_add_u32 v14, v0, 2, s{t0}", "v_mov_b32 v15, 0",
      "v_cmp_gt_u32 vcc, 8, v0", "s_and_saveexec_b64 s[44:45], vcc", f"s_cbranch_execz {n}_end",
      f"global_store_dword v14, v15, s[{WS}:{WS+1}]")
    A.label(f"{n}_end")
    A("s_endpgm")
    return dict(name="glu_kernel", lines=A.lines, vgpr=256, accum=256, sgpr=64, lds=STAT + 512, grid=256, block=512)
```

```python
import sys
from gen import *
from gen_fft import gen_fft
ks = [gen_k1(), gen_fft()]
L = ["k1_kernel", "fft_kernel"]
try:
    from gen_glu import gen_glu
    ks.append(gen_glu()); L.append("glu_kernel")
    from gen_down import gen_down
    ks += gen_down(); L += ["down0_kernel", "fft_kernel", "glu_kernel", "down1_kernel"]
except ImportError as e:
    print("partial:", e)
assemble(ks, L, sys.argv[1] if len(sys.argv) > 1 else "cur.s")
```

```python
import re

class Asm:
    def __init__(self):
        self.lines = []
    def __call__(self, *txt):
        for t in txt:
            for l in t.split("\n"):
                l = l.strip()
                if l:
                    self.lines.append(l)
    def label(self, name):
        self.lines.append(name + ":")
    PROF = False
    nst = 0
    def stamp(self, tag=""):
        if not Asm.PROF: return
        i = self.nst; self.nst += 1
        assert i < 14
        self.lines.append(f"s_memtime s[{66+2*i}:{67+2*i}]")
        self.tags = getattr(self, "tags", []) + [tag]
    def stamp_begin(self):
        if Asm.PROF:
            self.lines.append("s_memrealtime s[64:65]")
            self.stamp("begin")
    def finish(self, n):
        self.label(f"{n}_end")
        if Asm.PROF:
            self("s_mov_b64 exec, -1")
            self.stamp("preend")
            self("s_waitcnt vmcnt(0)")
            self.stamp("end")
            self("s_memrealtime s[94:95]", "s_waitcnt lgkmcnt(0)",
                 "s_lshl_b32 s96, s2, 3", "s_add_u32 s96, s96, s3", "s_lshl_b32 s96, s96, 7", f"s_add_u32 s96, s96, {32<<20}",
                 "v_mov_b32 v2, s96")
            for i in range(16):
                self(f"v_mov_b32 v0, s{64+2*i}", f"v_mov_b32 v1, s{65+2*i}", f"global_store_dwordx2 v2, v[0:1], s[22:23] offset:{8*i}", "s_nop 1")
            print("stamps", n, self.tags)
        self.label(f"{n}_end2")
        self("s_endpgm")
    def comment(self, t):
        self.lines.append("; " + t)

def vr(b, n=1, k="v"):
    return f"{k}{b}" if n == 1 else f"{k}[{b}:{b+n-1}]"
def ar(b, n=1): return vr(b, n, "a")
def sr(b, n=1): return vr(b, n, "s")

_reg = re.compile(r"^(-|\|)?([vas])(\d+)\|?$")
_regr = re.compile(r"^(-|\|)?([vas])\[(\d+):(\d+)\]\|?$")

def regs_of(op):
    op = op.strip()
    m = _reg.match(op)
    if m: return {(m.group(2), int(m.group(3)))}
    m = _regr.match(op)
    if m: return {(m.group(2), i) for i in range(int(m.group(3)), int(m.group(4)) + 1)}
    if op == "vcc": return {("s", "vcc")}
    if op == "exec": return {("s", "exec")}
    if op == "m0": return {("s", "m0")}
    return set()

TRANS = ("v_exp_f32", "v_log_f32", "v_rcp_f32", "v_rsq_f32", "v_sqrt_f32", "v_sin_f32", "v_cos_f32", "v_rcp_iflag_f32")

class Ins:
    __slots__ = ("text", "mn", "ops", "kind", "w", "r", "mfma", "isnop", "nopn", "target", "uncond", "dpp")
    def __init__(self, text):
        self.text = text
        t = text.split(";")[0].strip()
        parts = t.split(None, 1)
        mn = parts[0]
        self.mn = mn
        rest = parts[1] if len(parts) > 1 else ""
        ops = []; cur = ""; depth = 0
        for ch in rest:
            if ch == "[": depth += 1
            if ch == "]": depth -= 1
            if ch == "," and depth == 0:
                ops.append(cur.strip()); cur = ""
            else: cur += ch
        if cur.strip(): ops.append(cur.strip())
        mods = ""
        if ops:
            sp = ops[-1].split(None, 1)
            if len(sp) > 1:
                ops[-1] = sp[0]; mods = sp[1]
        self.ops = ops
        self.w = set(); self.r = set(); self.mfma = None
        self.isnop = mn == "s_nop"; self.nopn = int(ops[0]) + 1 if self.isnop else 1
        self.target = None; self.uncond = False
        self.dpp = ("row_" in mods or "quad_perm" in mods or "wave_" in mods or "_dpp" in mn)
        R = lambda i: regs_of(ops[i]) if i < len(ops) else set()
        allr = lambda lo: set().union(*[regs_of(o) for o in ops[lo:]]) if len(ops) > lo else set()
        if mn.startswith("v_mfma"):
            self.kind = "mfma"
            self.w = R(0); self.r = allr(1)
            passes = 8 if "32x32" in mn else 4
            self.mfma = (passes, ops[0], ops[3], R(1) | R(2), R(3))
        elif mn.startswith("v_"):
            self.kind = "trans" if mn.replace("_e32", "").replace("_e64", "") in TRANS else "valu"
            if "permlane" in mn and "swap" in mn:
                self.w = R(0) | R(1); self.r = R(0) | R(1)
            elif mn.startswith(("v_add_co", "v_addc_co", "v_sub_co", "v_subb_co", "v_subrev_co")):
                self.w = R(0) | R(1); self.r = allr(2)
            elif mn.startswith("v_cmpx"):
                self.w = {("s", "exec")} | R(0); self.r = allr(1)
            else:
                self.w = R(0); self.r = allr(1)
                if mn.startswith(("v_fmac", "v_mac", "v_dot2c", "v_pk_fmac", "v_writelane")) or self.dpp:
                    self.r |= R(0)
        elif mn.startswith("ds_"):
            self.kind = "ds"
            if mn.startswith(("ds_read", "ds_bpermute", "ds_permute", "ds_swizzle")):
                self.w = R(0); self.r = allr(1)
            else:
                self.r = allr(0)
        elif mn.startswith(("global_", "buffer_", "flat_")):
            self.kind = "vmem"
            if "load_lds" in mn or (" lds" in (" " + mods)):
                self.r = allr(0) | {("s", "m0")}
            elif "load" in mn:
                self.w = R(0); self.r = allr(1)
            elif "atomic" in mn:
                self.r = allr(0)
            else:
                self.r = allr(0)
        elif mn.startswith("s_"):
            self.kind = "salu"
            if mn.startswith(("s_cbranch", "s_branch")):
                self.target = ops[0]; self.uncond = mn == "s_branch"
            elif mn == "s_endpgm":
                self.uncond = True
            elif mn.startswith(("s_cmp", "s_waitcnt", "s_barrier", "s_nop", "s_setprio", "s_sleep", "s_bitcmp")):
                self.r = allr(0)
            else:
                self.w = R(0); self.r = allr(1)
                if "saveexec" in mn: self.w |= {("s", "exec")}
        else:
            raise ValueError("unknown instr " + text)

def isvalu(i): return i.kind in ("valu", "trans")
def vg(S): return {x for x in S if x[0] in "va"}
def sg(S): return {x for x in S if x[0] == "s"}

def need(p, c):
    n = 0
    if p.kind == "mfma":
        passes, dtxt, ctxt, ab, cc = p.mfma
        big = passes == 8
        if c.kind == "mfma":
            cp, cd, cctxt, cab, ccc = c.mfma
            if p.w & cab: n = max(n, 12 if big else 8)
            if p.w & ccc:
                if not (cctxt == dtxt and cp == passes): n = max(n, 10 if big else 6)
        else:
            if p.w & (c.r | c.w): n = max(n, 12 if big else 8)
            if isvalu(c) and (cc & c.w): n = max(n, 7 if big else 3)
    if isvalu(p):
        pv = vg(p.w); ps = sg(p.w)
        if c.kind == "mfma" and (pv & c.r): n = max(n, 2)
        if p.kind == "trans" and (pv & c.r) and c.kind != "trans": n = max(n, 1)
        if isvalu(c):
            if ("permlane" in c.mn or c.dpp) and (pv & c.r): n = max(n, 2)
            if c.mn.startswith(("v_readlane", "v_readfirstlane")) and (pv & c.r): n = max(n, 1)
            if ps & c.r: n = max(n, 4 if c.mn.startswith(("v_readlane", "v_writelane")) else 2)
            if ("op_sel" in p.text or "dst_sel" in p.text) and not p.mn.startswith("v_pk_") and (pv & (c.r | c.w)): n = max(n, 1)
            if p.mn.startswith("v_dot") and (pv & (c.r | c.w)):
                same = c.mn == p.mn and c.ops[-1:] == p.ops[:1] and not (pv & (regs_of(c.ops[1]) | regs_of(c.ops[2])))
                if not same: n = max(n, 3)
        elif p.mn.startswith("v_dot") and (pv & (c.r | c.w)): n = max(n, 3)
        if c.kind == "vmem" and (ps & c.r): n = max(n, 5)
        if ("s", "exec") in ps and c.kind == "mfma": n = max(n, 4)
    if p.kind == "vmem" and ("store" in p.mn or "atomic" in p.mn) and ("x4" in p.mn or "x3" in p.mn):
        data = regs_of(p.ops[1])
        if data & c.w: n = max(n, 2 if isvalu(c) else 1)
    if p.kind == "salu" and ("s", "m0") in p.w and c.kind == "vmem" and ("s", "m0") in c.r: n = max(n, 1)
    return n

MAXW = 12
def fix_hazards(lines, verbose=False):
    items = []
    for l in lines:
        if l.startswith(";") or l.startswith("."):
            items.append(("x", l))
        elif l.endswith(":"):
            items.append(("l", l[:-1]))
        else:
            items.append(("i", Ins(l)))
    total = 0
    def maps():
        labels = {v: i for i, (k, v) in enumerate(items) if k == "l"}
        br = {}
        for i, (k, v) in enumerate(items):
            if k == "i" and v.target in labels:
                br.setdefault(labels[v.target], []).append(i)
        return br
    for rnd in range(3):
        branches = maps()
        i = 0; nins = 0
        while i < len(items):
            k, c = items[i]
            if k != "i" or c.isnop:
                i += 1; continue
            worst = 0
            stack = [(i - 1, 0, True)]; seen = {}
            while stack:
                j, d, ft = stack.pop()
                if j < 0 or d >= MAXW: continue
                kk, p = items[j]
                if kk == "i" and ft and p.uncond: continue
                if seen.get(j, 99) <= d: continue
                seen[j] = d
                if kk == "x": stack.append((j - 1, d, True)); continue
                if kk == "l":
                    stack.append((j - 1, d, True))
                    for b in branches.get(j, []): stack.append((b, d, False))
                    continue
                nd = need(p, c)
                if nd > d: worst = max(worst, nd - d)
                stack.append((j - 1, d + p.nopn, True))
            if worst:
                if verbose: print("nop", worst, "before", c.text)
                n = worst; total += n; nins += 1
                while n > 0:
                    m = min(n, 8); items.insert(i, ("i", Ins(f"s_nop {m-1}"))); n -= m; i += 1
                branches = maps()
            i += 1
        if nins == 0: break
    res = []
    for k, v in items:
        res.append(v if k == "x" else (v + ":" if k == "l" else v.text))
    return res, total
```

```python
import sys, math
from asmgen import *

MB = 1 << 20
OFF = dict(ZA=0, ZB=2*MB, SSQ=4*MB, W13=5*MB, H=9*MB, W2P=16*MB, W2T=18*MB, WF=20*MB, X3=22*MB)
NAME = "interleave_layers__spectral_gfnet__glu_gated_swiglu__prompt"
import struct
def f2u(x): return struct.unpack("<I", struct.pack("<f", x))[0]
def fl(x): return hex(f2u(x))
INV_SQRT512 = 1/math.sqrt(512)

X, WR, WI, BX, W1, W3, W2, OUT, DBG, WS = 4, 6, 8, 10, 12, 14, 16, 18, 20, 22

def prologue(A, name, nwg):
    A.stamp_begin()
    A(f"s_cmp_ge_u32 s2, {nwg}", f"s_cbranch_scc1 {name}_end2",
      "s_load_dwordx16 s[4:19], s[0:1], 0", "s_load_dwordx4 s[20:23], s[0:1], 64")

def sadd64(A, dst, src, off):
    A(f"s_add_u32 s{dst}, s{src}, {off}", f"s_addc_u32 s{dst+1}, s{src+1}, 0")

MF = "v_mfma_f32_16x16x32_bf16"
import os
SC1 = "" if os.environ.get("NOSC1") else " sc1"
LD = 0 if os.environ.get("NOFRESH") else 24*MB

def gen_k1():
    A = Asm(); n = "k1"
    sW, sCR, sG, sRT, sROT, sSTR = 3, 24, 25, 26, 27, 28
    sT = [30, 32, 34, 36]; sOB, sNTS, sPS, sROLE = 38, 40, 41, 46
    t0, t1, t2, t3 = 42, 43, 44, 45
    vLane, vLP, vOL, vX0, vX1 = 2, 3, 4, 5, 6
    vRho, vKq = 7, 8
    vA = 9
    ACC = 128; FB = [64, 80]; WB = [96, 112]
    prologue(A, n, 256)
    A(f"v_lshrrev_b32 v1, 6, v0", f"v_and_b32 v{vLane}, 63, v0", f"v_readfirstlane_b32 s{sW}, v1",
      f"v_and_b32 v{vRho}, 15, v0", f"v_bfe_u32 v{vKq}, v0, 4, 2",
      f"s_lshr_b32 s{sCR}, s2, 3", f"s_and_b32 s{sCR}, s{sCR}, 7",
      f"s_and_b32 s{sG}, s2, 7", f"s_lshr_b32 s{t0}, s2, 6", f"s_lshl_b32 s{t0}, s{t0}, 3",
      f"s_add_u32 s{sG}, s{sG}, s{t0}", f"s_lshl_b32 s{sROT}, s{sCR}, 1")
    A(f"s_lshr_b32 s{t0}, s2, 2", f"s_mul_i32 s{t0}, s{t0}, 514", f"s_mul_i32 s{t1}, s{sW}, 131584",
      f"s_add_u32 s{t0}, s{t0}, s{t1}", f"s_and_b32 s{t1}, s2, 3", f"s_lshl_b32 s{t1}, s{t1}, 7",
      f"s_add_u32 s{t0}, s{t0}, s{t1}", f"s_add_u32 s{t0}, s{t0}, 2",
      f"v_lshl_add_u32 v10, v{vLane}, 1, s{t0}")
    A(f"s_lshr_b32 s{t0}, s2, 4", f"s_and_b32 s{t0}, s{t0}, 7", f"s_lshl_b32 s{t0}, s{t0}, 3",
      f"s_lshl_b32 s{t1}, s{sW}, 1", f"s_add_u32 s{t0}, s{t0}, s{t1}", f"s_lshl_b32 s{t0}, s{t0}, 5",
      f"s_and_b32 s{t1}, s2, 15", f"s_add_u32 s{t0}, s{t0}, s{t1}",
      f"s_lshr_b32 s{t1}, s2, 7", f"s_lshl_b32 s{t1}, s{t1}, 4", f"s_add_u32 s{t0}, s{t0}, s{t1}",
      f"s_lshl_b32 s{t0}, s{t0}, 10",
      f"v_lshrrev_b32 v11, 5, v{vLane}", f"v_lshlrev_b32 v11, 15, v11", f"v_and_b32 v12, 31, v{vLane}",
      f"v_lshl_add_u32 v11, v12, 5, v11", f"v_add_u32 v11, s{t0}, v11")
    A("s_waitcnt lgkmcnt(0)")
    A.stamp("kernarg")
    for idx in range(8):
        mt, jj = idx >> 2, idx & 3
        off = (16*mt + jj) * 32896
        if idx: A(f"v_add_u32 v12, {off}, v10")
        r = "v10" if idx == 0 else "v12"
        A(f"global_load_ushort v{16+idx}, {r}, s[{WR}:{WR+1}]", f"global_load_ushort v{24+idx}, {r}, s[{WI}:{WI+1}]")
    A(f"global_load_dwordx4 v[32:35], v11, s[{X}:{X+1}]", f"global_load_dwordx4 v[36:39], v11, s[{X}:{X+1}] offset:16")
    A(f"s_mov_b32 s{sROLE}, 3", f"s_cmp_ge_u32 s{sG}, 29", f"s_cbranch_scc1 {n}_r1done",
      f"s_cmp_ge_u32 s{sG}, 15", f"s_cbranch_scc1 {n}_role_c",
      f"s_cmp_ge_u32 s{sG}, 8", f"s_cbranch_scc1 {n}_role_b")
    A(f"s_mov_b32 s{sROLE}, 0",
      f"s_lshr_b32 s{t0}, s{sW}, 1", f"s_lshl_b32 s{t0}, s{t0}, 18",
      f"s_and_b32 s{t1}, s{sG}, 3", f"s_lshl_b32 s{t1}, s{t1}, 19", f"s_add_u32 s{t0}, s{t0}, s{t1}",
      f"s_and_b32 s{t1}, s{sW}, 1", f"s_lshl_b32 s{t1}, s{t1}, 13", f"s_add_u32 s{t0}, s{t0}, s{t1}",
      f"s_lshr_b32 s{t1}, s{sG}, 2", f"s_lshl_b32 s{t1}, s{t1}, 14", f"s_add_u32 s{t0}, s{t0}, s{t1}")
    sadd64(A, sT[0], X, f"s{t0}"); sadd64(A, sT[1], sT[0], 131072); sadd64(A, sT[2], sT[0], 4096); sadd64(A, sT[3], sT[0], 135168)
    A(f"v_and_b32 v12, 3, v{vRho}", f"v_lshlrev_b32 v12, 15, v12", f"v_lshrrev_b32 v13, 2, v{vRho}",
      f"v_lshl_add_u32 v12, v13, 10, v12", f"v_lshl_add_u32 v{vLP}, v{vKq}, 4, v12",
      f"s_mov_b32 s{sSTR}, 64",
      f"s_lshl_b32 s{t0}, s{sCR}, 18", f"s_lshl_b32 s{t1}, s{sG}, 9", f"s_add_u32 s{t0}, s{t0}, s{t1}",
      f"s_lshl_b32 s{t1}, s{sW}, 7", f"s_add_u32 s{t0}, s{t0}, s{t1}")
    if OFF["ZA"]: A(f"s_add_u32 s{t0}, s{t0}, {OFF['ZA']}")
    sadd64(A, sOB, WS, f"s{t0}")
    A(f"v_lshlrev_b32 v12, 12, v{vRho}", f"v_lshl_add_u32 v{vOL}, v{vKq}, 4, v12",
      f"s_mov_b32 s{sNTS}, 65536", f"s_mov_b32 s{sPS}, 64", f"s_branch {n}_ab_common")
    A.label(f"{n}_role_b")
    A(f"s_mov_b32 s{sROLE}, 1", f"s_sub_u32 s{sRT}, s{sG}, 8",
      f"s_lshl_b32 s{t0}, s{sRT}, 18", f"s_lshl_b32 s{t1}, s{sW}, 16", f"s_add_u32 s{t0}, s{t0}, s{t1}")
    sadd64(A, sT[0], W2, f"s{t0}"); sadd64(A, sT[1], sT[0], 16384); sadd64(A, sT[2], sT[0], 32768); sadd64(A, sT[3], sT[0], 49152)
    A(f"v_lshlrev_b32 v12, 10, v{vRho}", f"v_lshl_add_u32 v{vLP}, v{vKq}, 4, v12",
      f"s_mov_b32 s{sSTR}, 64",
      f"s_mul_i32 s{t0}, s{sCR}, {4*56}", f"s_lshl_b32 s{t1}, s{sRT}, 3", f"s_add_u32 s{t0}, s{t0}, s{t1}",
      f"s_lshl_b32 s{t1}, s{sW}, 1", f"s_add_u32 s{t0}, s{t0}, s{t1}", f"s_lshl_b32 s{t0}, s{t0}, 10",
      f"s_add_u32 s{t0}, s{t0}, {OFF['W2P']}")
    sadd64(A, sOB, WS, f"s{t0}")
    A(f"v_lshlrev_b32 v{vOL}, 4, v{vLane}", f"s_mov_b32 s{sNTS}, 57344", f"s_mov_b32 s{sPS}, 1024")
    A.label(f"{n}_ab_common")
    A(f"v_lshlrev_b32 v12, 10, v{vKq}", f"v_lshl_add_u32 v{vX0}, v{vRho}, 4, v12",
      f"v_xor_b32 v{vX1}, 64, v{vX0}", f"v_add_u32 v{vX1}, 256, v{vX1}", f"s_branch {n}_r1")
    A.label(f"{n}_role_c")
    A(f"s_mov_b32 s{sROLE}, 2", f"s_sub_u32 s{sRT}, s{sG}, 15",
      f"s_cmp_ge_u32 s{sW}, 2", f"s_cselect_b32 s{sT[0]}, s{W3}, s{W1}", f"s_cselect_b32 s{sT[0]+1}, s{W3+1}, s{W1+1}",
      f"s_lshl_b32 s{t0}, s{sRT}, 8", f"s_and_b32 s{t1}, s{sW}, 1", f"s_lshl_b32 s{t1}, s{t1}, 7",
      f"s_add_u32 s{t0}, s{t0}, s{t1}")
    sadd64(A, sT[0], sT[0], f"s{t0}"); sadd64(A, sT[1], sT[0], 28672); sadd64(A, sT[2], sT[0], 2*28672); sadd64(A, sT[3], sT[0], 3*28672)
    A(f"v_lshrrev_b32 v12, 3, v{vLane}", f"v_mul_u32_u24 v12, 3584, v12", f"v_and_b32 v13, 7, v{vLane}",
      f"v_lshl_add_u32 v{vLP}, v13, 4, v12",
      f"s_mov_b32 s{sSTR}, 114688",
      f"s_lshl_b32 s{t0}, s{sRT}, 18", f"s_lshl_b32 s{t1}, s{sCR}, 15", f"s_add_u32 s{t0}, s{t0}, s{t1}",
      f"s_and_b32 s{t1}, s{sW}, 1", f"s_lshl_b32 s{t1}, s{t1}, 13", f"s_add_u32 s{t0}, s{t0}, s{t1}",
      f"s_lshr_b32 s{t1}, s{sW}, 1", f"s_lshl_b32 s{t1}, s{t1}, 10", f"s_add_u32 s{t0}, s{t0}, s{t1}",
      f"s_add_u32 s{t0}, s{t0}, {OFF['W13']}")
    sadd64(A, sOB, WS, f"s{t0}")
    A(f"v_lshlrev_b32 v{vOL}, 4, v{vLane}", f"s_mov_b32 s{sNTS}, 2048", f"s_mov_b32 s{sPS}, 16384",
      f"v_lshrrev_b32 v12, 2, v{vRho}", f"v_lshlrev_b32 v12, 3, v12", f"v_lshrrev_b32 v13, 3, v{vRho}",
      f"v_lshl_add_u32 v12, v13, 2, v12", f"v_and_b32 v13, 3, v{vRho}", f"v_add_u32 v12, v12, v13",
      f"v_lshlrev_b32 v12, 4, v12", f"v_lshl_add_u32 v{vX0}, v{vKq}, 10, v12", f"v_xor_b32 v{vX1}, 64, v{vX0}")
    A.label(f"{n}_r1")
    A(f"s_lshl_b32 s{t0}, s{sROT}, 12", f"v_add_u32 v{vX0}, s{t0}, v{vX0}", f"v_add_u32 v{vX1}, s{t0}, v{vX1}")
    def chunk_loads(j):
        L = [f"s_xor_b32 s{t0}, s{sROT}, {j}", f"s_mul_i32 s{t0}, s{t0}, s{sSTR}", f"v_add_u32 v{vA}, s{t0}, v{vLP}"]
        for pi in range(4):
            L.append(f"global_load_dwordx4 a[{16*j+4*pi}:{16*j+4*pi+3}], v{vA}, s[{sT[pi]}:{sT[pi]+1}]")
        return L
    NR1 = 11
    for j in range(NR1): A(*chunk_loads(j))
    A.label(f"{n}_r1done")
    A.stamp("r1issued")
    A(f"s_lshl_b32 s{t0}, s2, 1", f"v_lshrrev_b32 v12, 7, v0", f"v_add_u32 v12, s{t0}, v12", f"v_and_b32 v12, 15, v12",
      f"v_bfe_u32 v13, v0, 1, 4",
      f"v_bfe_u32 v14, v0, 5, 2",
      f"v_lshrrev_b32 v15, 1, v12", f"v_lshlrev_b32 v15, 5, v15",
      f"v_and_b32 v12, 1, v12", f"v_lshl_add_u32 v15, v12, 2, v15",
      f"v_lshrrev_b32 v12, 2, v13", f"v_lshl_add_u32 v15, v12, 3, v15",
      f"v_and_b32 v12, 3, v13", f"v_add_u32 v15, v15, v12",
      f"s_lshr_b32 s{t0}, s2, 7", f"s_lshl_b32 s{t0}, s{t0}, 8", f"v_add_u32 v15, s{t0}, v15",
      f"s_lshr_b32 s{t0}, s2, 3", f"s_and_b32 s{t0}, s{t0}, 15", f"s_lshl_b32 s{t0}, s{t0}, 4", f"s_add_u32 s{t0}, s{t0}, 1",
      f"v_and_b32 v12, 1, v0", f"v_lshlrev_b32 v12, 1, v12", f"v_lshl_add_u32 v12, v14, 2, v12", f"v_add_u32 v12, s{t0}, v12",
      f"v_mul_u32_u24 v13, v12, v15", f"v_add_u32 v14, v13, v15",
      f"v_and_b32 v13, 511, v13", f"v_and_b32 v14, 511, v14",
      f"v_cvt_f32_u32 v13, v13", f"v_cvt_f32_u32 v14, v14",
      f"v_mul_f32 v13, {fl(1/512)}, v13", f"v_mul_f32 v14, {fl(1/512)}, v14",
      f"v_cmp_eq_u32 vcc, 255, v12",
      f"v_cos_f32 v40, v13", f"v_sin_f32 v41, v13", f"v_cos_f32 v42, v14", f"v_sin_f32 v43, v14",
      f"v_mov_b32 v44, {fl(1/16)}", f"v_mov_b32 v45, {fl(INV_SQRT512)}",
      f"v_cndmask_b32 v46, v44, v45, vcc",
      f"v_mul_f32 v40, v44, v40", f"v_mul_f32 v41, {fl(-1/16)}, v41", f"v_mul_f32 v42, v46, v42", f"v_mul_f32 v43, {fl(-1/16)}, v43",
      f"v_cndmask_b32 v43, v43, v45, vcc",
      f"v_cvt_pk_bf16_f32 v40, v40, v41", f"v_cvt_pk_bf16_f32 v41, v42, v43",
      f"s_lshl_b32 s{t0}, s2, 11", f"s_add_u32 s{t0}, s{t0}, {OFF['W13'] + 14*262144}",
      f"v_lshl_add_u32 v12, v0, 3, s{t0}",
      f"global_store_dwordx2 v12, v[40:41], s[{WS}:{WS+1}]")
    A.stamp("fslice")
    A(f"s_cmp_eq_u32 s{sROLE}, 3", f"s_cbranch_scc1 {n}_fgen_done")
    vK, vDl, vA0, vScC, vScS, vAdS = 10, 11, 12, 13, 14, 15
    vAE, vAC, vAS = 40, 41, 42
    vM2, vMA, vMB = 43, 44, 45
    A(f"v_and_b32 v46, 31, v0", f"s_lshl_b32 s{t0}, s{sCR}, 5", f"s_add_u32 s{t0}, s{t0}, 1", f"v_add_u32 v{vK}, s{t0}, v46",
      f"v_lshrrev_b32 v47, 5, v0",
      f"v_cvt_f32_u32 v{vDl}, v{vK}", f"v_mul_f32 v{vDl}, {fl(1/512)}, v{vDl}",
      f"v_mul_u32_u24 v48, v{vK}, v47", f"v_lshlrev_b32 v48, 3, v48", f"v_and_b32 v48, 511, v48",
      f"v_cvt_f32_u32 v48, v48", f"v_mul_f32 v{vA0}, {fl(1/512)}, v48",
      f"v_cmp_eq_u32 vcc, 256, v{vK}",
      f"v_mov_b32 v48, {fl(1/16)}", f"v_mov_b32 v49, {fl(INV_SQRT512)}", f"v_cndmask_b32 v{vScC}, v48, v49, vcc",
      f"v_mov_b32 v48, {fl(-1/16)}", f"v_cndmask_b32 v{vScS}, v48, 0, vcc" if False else f"v_mov_b32 v50, 0",
      f"v_cndmask_b32 v{vScS}, v48, v50, vcc",
      f"s_cmp_eq_u32 s{sROLE}, 2", f"s_cselect_b32 s{t0}, 0, {fl(INV_SQRT512)}", f"v_mov_b32 v49, s{t0}",
      f"v_cndmask_b32 v{vAdS}, v50, v49, vcc",
      f"v_lshlrev_b32 v48, 1, v46", f"v_bfe_u32 v49, v48, 4, 1", f"v_lshlrev_b32 v49, 2, v49", f"v_xor_b32 v48, v48, v49",
      f"v_lshl_add_u32 v48, v47, 6, v48", f"v_lshlrev_b32 v{vAE}, 4, v48",
      f"v_and_b32 v48, 1, v{vK}", f"v_lshlrev_b32 v49, 4, v48",
      f"v_add_u32 v{vAC}, v{vAE}, v49", f"v_xor_b32 v{vAS}, 16, v{vAC}",
      f"v_mov_b32 v50, 0x80008000",
      f"v_mul_lo_u32 v{vM2}, v48, v50",
      f"v_bfe_u32 v49, v{vK}, 1, 1", f"v_mul_lo_u32 v{vMB}, v49, v50",
      f"v_xor_b32 v{vMA}, v{vM2}, v{vMB}",
      f"s_mov_b32 s{t1}, 2")
    A.label(f"{n}_fgen_loop")
    PC, PS, TC, TS = 52, 56, 60, 16+0
    RC, RS = 96, 104
    XC, XS = 112, 116
    A(f"v_mov_b32 v46, v{vA0}")
    for e in range(8):
        A(f"v_cos_f32 v{RC+e}, v46", f"v_sin_f32 v{RS+e}, v46")
        if e < 7: A(f"v_add_f32 v46, v46, v{vDl}")
    for e in range(8):
        A(f"v_mul_f32 v{RC+e}, v{vScC}, v{RC+e}", f"v_fma_f32 v{RS+e}, v{RS+e}, v{vScS}, v{vAdS}")
    for e in range(4):
        A(f"v_cvt_pk_bf16_f32 v{PC+e}, v{RC+2*e}, v{RC+2*e+1}", f"v_cvt_pk_bf16_f32 v{PS+e}, v{RS+2*e}, v{RS+2*e+1}")
    A(f"ds_write_b128 v{vAE}, v[{PC}:{PC+3}]", f"ds_write_b128 v{vAE}, v[{PS}:{PS+3}] offset:16")
    for r, (ac, as_, offc, offs, mc, ms) in {1: (vAC, vAS, 0, 0, vMA, vMB), 2: (vAE, vAE, 0, 16, vM2, vM2), 3: (vAC, vAS, 0, 0, vMB, vMA)}.items():
        xc, xs = (XC, XS) if r != 2 else (RC, RC+4)
        if r == 3: xc, xs = RS, RS+4
        for e in range(4): A(f"v_xor_b32 v{xc+e}, v{PC+e}, v{mc}")
        A(f"ds_write_b128 v{ac}, v[{xc}:{xc+3}] offset:{16384*r + offc}")
        for e in range(4): A(f"v_xor_b32 v{xs+e}, v{PS+e}, v{ms}")
        A(f"ds_write_b128 v{as_}, v[{xs}:{xs+3}] offset:{16384*r + offs}")
    A(f"v_lshlrev_b32 v46, 6, v{vDl}" if False else f"v_fma_f32 v{vA0}, v{vDl}, {fl(64.0)}, v{vA0}" if False else f"v_mul_f32 v46, {fl(64.0)}, v{vDl}",
      f"v_add_f32 v{vA0}, v{vA0}, v46", f"v_fract_f32 v{vA0}, v{vA0}",
      f"v_add_u32 v{vAE}, 8192, v{vAE}", f"v_add_u32 v{vAC}, 8192, v{vAC}", f"v_add_u32 v{vAS}, 8192, v{vAS}",
      f"s_sub_u32 s{t1}, s{t1}, 1", f"s_cmp_lg_u32 s{t1}, 0", f"s_cbranch_scc1 {n}_fgen_loop")
    A.label(f"{n}_fgen_done")
    A.stamp("fgen")
    A(f"s_cmp_eq_u32 s{sROLE}, 3", f"s_cbranch_scc0 {n}_w45", "s_waitcnt vmcnt(0)")
    A.label(f"{n}_w45")
    A(f"s_waitcnt vmcnt({4*NR1 + 1})")
    A.stamp("prepwait")
    for e in range(4):
        A(f"v_lshl_or_b32 v{40+e}, v{17+2*e}, 16, v{16+2*e}", f"v_lshl_or_b32 v{44+e}, v{25+2*e}, 16, v{24+2*e}")
    A(f"s_and_b32 s{t0}, s2, 3", f"s_lshl_b32 s{t0}, s{t0}, 19", f"s_lshr_b32 s{t1}, s2, 2", f"s_lshl_b32 s{t1}, s{t1}, 7",
      f"s_add_u32 s{t0}, s{t0}, s{t1}", f"s_lshl_b32 s{t1}, s{sW}, 5", f"s_add_u32 s{t0}, s{t0}, s{t1}",
      f"s_add_u32 s{t0}, s{t0}, {OFF['WF']}", f"v_lshlrev_b32 v12, 13, v{vLane}", f"v_add_u32 v12, s{t0}, v12",
      f"global_store_dwordx4 v12, v[40:43], s[{WS}:{WS+1}]", f"global_store_dwordx4 v12, v[44:47], s[{WS}:{WS+1}] offset:16")
    for e in range(8):
        A(f"v_lshlrev_b32 v{48+2*e}, 16, v{32+e}", f"v_and_b32 v{49+2*e}, 0xffff0000, v{32+e}")
    def red32(r, tmp):
        for sh in (8, 4, 2, 1):
            A(f"v_add_f32_dpp v{r}, v{r}, v{r} row_ror:{sh} row_mask:0xf bank_mask:0xf")
        A(f"v_mov_b32 v{tmp}, v{r}", f"v_permlane16_swap_b32 v{r}, v{tmp}", f"v_add_f32 v{r}, v{r}, v{tmp}")
    A("v_add_f32 v13, v48, v49")
    for e in range(2, 16): A(f"v_add_f32 v13, v13, v{48+e}")
    red32(13, 14)
    A(f"v_mul_f32 v13, {fl(-1/512)}, v13")
    for e in range(16): A(f"v_add_f32 v{48+e}, v{48+e}, v13")
    A("v_mul_f32 v13, v48, v48")
    for e in range(1, 16): A(f"v_fmac_f32 v13, v{48+e}, v{48+e}")
    red32(13, 14)
    A(f"s_lshl_b32 s{t0}, s2, 3", f"s_lshl_b32 s{t1}, s{sW}, 1", f"s_add_u32 s{t0}, s{t0}, s{t1}", f"s_lshl_b32 s{t0}, s{t0}, 2",
      f"s_add_u32 s{t0}, s{t0}, {OFF['SSQ']}", f"v_lshrrev_b32 v12, 5, v{vLane}", f"v_lshl_add_u32 v12, v12, 2, s{t0}",
      "s_mov_b32 exec_lo, 1", "s_mov_b32 exec_hi, 1",
      f"global_store_dword v12, v13, s[{WS}:{WS+1}]",
      "s_mov_b64 exec, -1")
    A(f"s_cmp_eq_u32 s{sROLE}, 3", f"s_cbranch_scc1 {n}_end")
    A.stamp("stats")
    for r in range(64): A(f"v_mov_b32 v{ACC+r}, 0")
    A("s_waitcnt lgkmcnt(0)", "s_barrier")
    A.stamp("barrier")
    vF0, vF1 = 10, 11
    def ffrag_addr(j):
        return [f"v_xor_b32 v{vF0}, {j << 12}, v{vX0}", f"v_xor_b32 v{vF1}, {j << 12}, v{vX1}"] if j else \
               [f"v_mov_b32 v{vF0}, v{vX0}", f"v_mov_b32 v{vF1}, v{vX1}"]
    def ffrag_reads(j):
        L = []
        if j % 2 == 0: L += ffrag_addr(j)
        b = FB[j & 1]
        for i in range(4):
            L.append(f"ds_read_b128 v[{b+4*i}:{b+4*i+3}], v{vF1 if i & 1 else vF0} offset:{512*(i >> 1) + 4096*(j & 1)}")
        return L
    def interleave(mf, other, start=1, every=1):
        out = []; o = list(other); k = 0
        for i, m in enumerate(mf):
            out.append(m)
            if i >= start - 1 and o and (i - start + 1) % every == 0:
                while o:
                    x = o.pop(0); out.append(x)
                    if x.startswith(("ds_", "global_", "s_waitcnt")): break
        return out + o
    NSTORE = 4
    A(f"s_cmp_eq_u32 s{sROLE}, 2", f"s_cbranch_scc1 {n}_loop_c")
    A(*ffrag_reads(0))
    for j in range(16):
        if j <= NR1 - 1: N = 4*(NR1-1-j) + NSTORE + 4*min(j, 16-NR1)
        else: N = 4*(15-j)
        A(f"s_waitcnt vmcnt({N}) lgkmcnt(0)")
        mf = []
        for nt in range(4):
            for mi in range(4):
                d = ACC + (mi*4 + nt)*4
                mf.append(f"{MF} v[{d}:{d+3}], a[{16*j+4*mi}:{16*j+4*mi+3}], v[{FB[j&1]+4*nt}:{FB[j&1]+4*nt+3}], v[{d}:{d+3}]")
        other = []
        if j < 15: other += ffrag_reads(j+1)
        if j < 16 - NR1: other += chunk_loads(NR1 + j)
        A(*interleave(mf, other))
    A(f"s_branch {n}_epi")
    A.label(f"{n}_loop_c")
    vWE, vWO = 12, 13; vTR = [14, 15, 16, 17]
    A(f"s_lshl_b32 s{t0}, s{sW}, 13", f"s_add_u32 s{t0}, s{t0}, 65536",
      f"v_lshrrev_b32 v18, 3, v{vLane}", f"v_lshlrev_b32 v18, 7, v18",
      f"v_bfe_u32 v19, v{vLane}, 1, 2", f"v_bfe_u32 v20, v{vLane}, 4, 1", f"v_xor_b32 v19, v19, v20",
      f"v_lshl_add_u32 v18, v19, 5, v18", f"v_and_b32 v19, 1, v{vLane}", f"v_lshl_add_u32 v18, v19, 4, v18",
      f"v_add_u32 v{vWE}, s{t0}, v18", f"v_xor_b32 v{vWO}, 64, v{vWE}",
      f"v_bfe_u32 v18, v{vLane}, 2, 2", f"v_lshl_add_u32 v19, v{vKq}, 3, v18", f"v_lshlrev_b32 v19, 7, v19",
      f"v_lshrrev_b32 v18, 1, v18", f"v_and_b32 v20, 1, v{vKq}", f"v_lshl_add_u32 v18, v20, 1, v18",
      f"v_lshl_add_u32 v19, v18, 5, v19", f"v_and_b32 v18, 3, v{vLane}", f"v_lshl_add_u32 v19, v18, 3, v19",
      f"v_add_u32 v{vTR[0]}, s{t0}, v19")
    for nt in range(1, 4): A(f"v_xor_b32 v{vTR[nt]}, {32*nt}, v{vTR[0]}")
    def stage_writes(j):
        return [f"ds_write_b128 v{vWO if pi & 1 else vWE}, a[{16*j+4*pi}:{16*j+4*pi+3}] offset:{(j&1)*4096 + pi*1024}" for pi in range(4)]
    def wfrag_reads(j):
        L = []
        b = WB[j & 1]
        for nt in range(4):
            for h in range(2):
                L.append(f"ds_read_b64_tr_b16 v[{b+4*nt+2*h}:{b+4*nt+2*h+1}], v{vTR[nt]} offset:{(j&1)*4096 + 512*h}")
        return L
    def Nc(jj, issued):
        return 4*(NR1-1-jj) + NSTORE + 4*issued if jj <= NR1-1 else 4*(15-jj)
    A(f"s_waitcnt vmcnt({Nc(0, 0)})", *stage_writes(0))
    A(f"s_waitcnt vmcnt({Nc(1, 0)})", *stage_writes(1))
    A(*wfrag_reads(0), *ffrag_reads(0))
    for j in range(16):
        A(f"s_waitcnt lgkmcnt({4 if 0 < j < 15 else 0})")
        mf = []
        for nt in range(4):
            for mi in range(4):
                d = ACC + (mi*4 + nt)*4
                mf.append(f"{MF} v[{d}:{d+3}], v[{FB[j&1]+4*mi}:{FB[j&1]+4*mi+3}], v[{WB[j&1]+4*nt}:{WB[j&1]+4*nt+3}], v[{d}:{d+3}]")
        other = []
        if j < 15: other += wfrag_reads(j+1) + ffrag_reads(j+1)
        if j < 16 - NR1: other += chunk_loads(NR1 + j)
        if j + 2 <= 15:
            other += [f"s_waitcnt vmcnt({Nc(j+2, min(j+1, 16-NR1))})"] + stage_writes(j+2)
        out = []; o = list(other)
        for i, m in enumerate(mf):
            out.append(m)
            take = (len(o) + (16 - i) - 1) // (16 - i) if i >= 0 else 0
            for _ in range(take):
                if o: out.append(o.pop(0))
        A(*out, *o)
    A.label(f"{n}_epi")
    A.stamp("epi")
    A(f"v_add_u32 v10, s{sPS}, v{vOL}")
    A(f"s_mov_b32 s{t2}, s{sOB}", f"s_mov_b32 s{t3}, s{sOB+1}")
    PK = 16
    for nt in range(4):
        for p in range(2):
            r = PK + 4*((2*nt + p) % 4)
            d0 = ACC + ((2*p)*4 + nt)*4; d1 = ACC + ((2*p+1)*4 + nt)*4
            A(f"v_cvt_pk_bf16_f32 v{r}, v{d0}, v{d0+1}", f"v_cvt_pk_bf16_f32 v{r+1}, v{d0+2}, v{d0+3}",
              f"v_cvt_pk_bf16_f32 v{r+2}, v{d1}, v{d1+1}", f"v_cvt_pk_bf16_f32 v{r+3}, v{d1+2}, v{d1+3}",
              f"global_store_dwordx4 v{vOL if p == 0 else 10}, v[{r}:{r+3}], s[{t2}:{t3}]")
        if nt < 3: A(f"s_add_u32 s{t2}, s{t2}, s{sNTS}", f"s_addc_u32 s{t3}, s{t3}, 0")
    A(f"s_cmp_eq_u32 s{sROLE}, 1", f"s_cbranch_scc0 {n}_end")
    A(f"s_mov_b32 s{sROLE}, 0")
    sadd64(A, sOB, sOB, OFF["W2T"] - OFF["W2P"])
    ID = [64, 68]
    for par in range(2):
        A(f"v_lshlrev_b32 v12, 3, v{vKq}", f"v_sub_u32 v12, v{vRho}, v12")
        if par: A("v_add_u32 v12, 16, v12")
        A(f"v_and_b32 v13, 1, v12", f"v_lshlrev_b32 v13, 4, v13", f"v_mov_b32 v14, 0x3f80", f"v_lshlrev_b32 v13, v13, v14",
          f"v_ashrrev_i32 v12, 1, v12")
        for r in range(4):
            A(f"v_cmp_eq_u32 vcc, {r}, v12", f"v_cndmask_b32 v{ID[par]+r}, 0, v13, vcc")
    for nt in range(4):
        for mi in range(4):
            d = ACC + (mi*4 + nt)*4; j = nt >> 1
            A(f"{MF} v[{d}:{d+3}], a[{16*j+4*mi}:{16*j+4*mi+3}], v[{ID[nt&1]}:{ID[nt&1]+3}], 0")
    A(f"s_branch {n}_epi")
    A.finish(n)
    return dict(name="k1_kernel", lines=A.lines, vgpr=512, accum=256, sgpr=64, lds=65536 + 32768, grid=256, block=256)

def assemble(kernels, launches, path):
    hdr = open("cdna_kernels/" + NAME + ".s.ref").read().split("\n")
    out = [l for l in hdr if l.startswith(";") and "@launch" not in l and "Override" not in l and "grid=ceil" not in l and "v1 =" not in l][:11]
    byname = {k["name"]: k for k in kernels}
    for nm in launches:
        k = byname[nm]
        out.append(f"; @launch kernel={nm} grid=({k['grid']},1,1) block=({k['block']},1,1) lds={k['lds']}")
    out.append('.amdgcn_target "amdgcn-amd-amdhsa--gfx950"')
    out.append(".text")
    tot = 0
    for k in kernels:
        lines, nn = fix_hazards(k["lines"])
        tot += nn
        out += [f".globl {k['name']}", ".p2align 8", f".type {k['name']},@function", f"{k['name']}:"]
        out += [("    " + l if not l.endswith(":") else l) for l in lines]
    out.append('.section .rodata,"a"')
    for k in kernels:
        out += [".p2align 6", f".amdhsa_kernel {k['name']}",
                f"  .amdhsa_next_free_vgpr {k['vgpr']}", f"  .amdhsa_next_free_sgpr {100 if Asm.PROF else k['sgpr']}",
                f"  .amdhsa_accum_offset {k['accum']}", "  .amdhsa_group_segment_fixed_size 0",
                "  .amdhsa_kernarg_size 80", "  .amdhsa_user_sgpr_count 2", "  .amdhsa_user_sgpr_kernarg_segment_ptr 1",
                "  .amdhsa_system_sgpr_workgroup_id_x 1", ".end_amdhsa_kernel"]
    open(path, "w").write("\n".join(out) + "\n")
    print(f"wrote {path}: {len(out)} lines, {tot} nop states inserted")

if __name__ == "__main__":
    ks = [gen_k1()]
    assemble(ks, ["k1_kernel"], sys.argv[1] if len(sys.argv) > 1 else "cur.s")
```

```python
from asmgen import *
from gen import *

def gen_down1(mode):
    A = Asm(); n = f"down{mode}"
    sW, sPT, sCT, t0, t1, t2 = 3, 24, 25, 26, 27, 28
    sA = [30, 32, 34, 36]; sB = [38, 40, 42, 44]; sR, sO = 46, 48
    vLane, vQ, vL, vO0, vO1, vR = 2, 3, 4, 5, 6, 7
    vWk = [None, 8, 9, 10]; vRd = 11
    RES = 16
    ACC = 64; RD = 128
    q4 = lambda b: f"v[{b}:{b+3}]"
    p2 = lambda b: f"v[{b}:{b+1}]"
    prologue(A, n, 256)
    TS = 56*1024
    A(f"v_lshrrev_b32 v1, 6, v0", f"v_and_b32 v{vLane}, 63, v0", f"v_readfirstlane_b32 s{sW}, v1",
      f"v_bfe_u32 v{vQ}, v0, 4, 2", f"v_and_b32 v{vL}, 15, v0",
      f"s_and_b32 s{t0}, s2, 7", f"s_lshl_b32 s{t0}, s{t0}, 2", f"s_lshr_b32 s{t1}, s2, 6", f"s_add_u32 s{sPT}, s{t0}, s{t1}",
      f"s_bfe_u32 s{sCT}, s2, 0x30003",
      f"s_mul_i32 s{t0}, s{sW}, {14*1024}", f"s_add_u32 s{t0}, s{t0}, 4096", f"v_lshl_add_u32 v{vO0}, v{vLane}, 4, s{t0}",
      f"v_add_u32 v{vO1}, 8192, v{vO0}",
      f"s_mul_i32 s{t0}, s{sPT}, {4*TS}", f"s_add_u32 s{t0}, s{t0}, {OFF['H']}",
      f"s_mul_i32 s{t1}, s{sCT}, {4*TS}", f"s_add_u32 s{t1}, s{t1}, {OFF['W2P'] if mode == 0 else OFF['W2T']}")
    tA, tB = (t0, t1) if mode == 0 else (t1, t0)
    if mode == 0:
        A(f"s_lshl_b32 s{t2}, s{sCT}, 2", f"s_add_u32 s{t2}, s{t2}, s{sW}", f"s_lshl_b32 s{t2}, s{t2}, 16",
          f"s_lshl_b32 s{sR}, s{sPT}, 7", f"s_add_u32 s{t2}, s{t2}, s{sR}",
          f"v_lshlrev_b32 v{vR}, 12, v{vL}", f"v_lshl_add_u32 v{vR}, v{vQ}, 5, v{vR}", f"v_add_u32 v{vR}, s{t2}, v{vR}")
    else:
        A(f"s_lshl_b32 s{t2}, s{sPT}, 2", f"s_add_u32 s{t2}, s{t2}, s{sW}", f"s_lshl_b32 s{t2}, s{t2}, 14",
          f"s_lshl_b32 s{sR}, s{sCT}, 11", f"s_add_u32 s{t2}, s{t2}, s{sR}",
          f"v_lshl_add_u32 v{vR}, v{vLane}, 4, s{t2}")
    A("s_waitcnt lgkmcnt(0)")
    A.stamp("kernarg")
    sadd64(A, sA[0], WS, f"s{tA}")
    sadd64(A, sR, WS, OFF["ZB"] if mode == 0 else OFF["X3"])
    A(f"global_load_dwordx4 {q4(RES)}, v{vR}, s[{sR}:{sR+1}]", f"global_load_dwordx4 {q4(RES+4)}, v{vR}, s[{sR}:{sR+1}] offset:{16 if mode == 0 else 1024}")
    for i in range(1, 4): sadd64(A, sA[i], sA[i-1], TS)
    for k in range(4):
        A(f"s_xor_b32 s{t2}, s{sW}, {k}", f"s_mul_i32 s{t2}, s{t2}, {TS}", f"s_add_u32 s{t2}, s{t2}, s{tB}")
        sadd64(A, sB[k], WS, f"s{t2}")
    def loads(kc):
        sl = kc % 8; v = vO0 if kc < 8 else vO1; off = (kc % 8)*1024 - 4096
        L = []
        order = [("B", 0), ("A", 0), ("A", 1), ("A", 2), ("A", 3), ("B", 1), ("B", 2), ("B", 3)]
        for t, i in order:
            r = 32*sl + (4*i if t == "A" else 16 + 4*i); s = (sA if t == "A" else sB)[i]
            L.append(f"global_load_dwordx4 a[{r}:{r+3}], v{v}, s[{s}:{s+1}] offset:{off}")
        return L
    for kc in range(7): A(*loads(kc))
    A.stamp("issued")
    for k in range(1, 4):
        A(f"s_xor_b32 s{t2}, s{sW}, {k}", f"s_mul_i32 s{t2}, s{t2}, 3", f"s_add_u32 s{t2}, s{t2}, {k-1}", f"s_lshl_b32 s{t2}, s{t2}, 12",
          f"v_lshl_add_u32 v{vWk[k]}, v{vLane}, 4, s{t2}")
    A(f"s_mul_i32 s{t2}, s{sW}, {3*4096}", f"v_lshl_add_u32 v{vRd}, v{vLane}, 4, s{t2}")
    if mode == 1:
        A(f"s_bfe_u32 s{t2}, s{sPT}, 0x30001", f"s_lshl_b32 s{t2}, s{t2}, 8",
          f"s_lshl_b32 s{t0}, s{sW}, 1", f"s_add_u32 s{t2}, s{t2}, s{t0}",
          f"s_and_b32 s{t0}, s{sPT}, 1", f"s_lshl_b32 s{t0}, s{t0}, 3", f"s_add_u32 s{t2}, s{t2}, s{t0}",
          f"s_lshr_b32 s{t0}, s{sPT}, 4", f"s_lshl_b32 s{t0}, s{t0}, 4", f"s_add_u32 s{t2}, s{t2}, s{t0}",
          f"s_lshl_b32 s{t2}, s{t2}, 10", f"s_lshl_b32 s{t0}, s{sCT}, 7", f"s_add_u32 s{t2}, s{t2}, s{t0}",
          f"v_and_b32 v12, 7, v{vL}", f"v_lshlrev_b32 v12, 15, v12", f"v_lshrrev_b32 v13, 3, v{vL}", f"v_lshl_add_u32 v12, v13, 10, v12",
          f"v_lshl_add_u32 v12, v{vQ}, 5, v12", f"v_add_u32 v12, s{t2}, v12")
    for kc in range(14):
        sl = kc % 8
        N = 8*(min(13, kc+6) - kc)
        A(f"s_waitcnt vmcnt({N})")
        if kc in (0, 1, 4, 7, 10, 13): A.stamp(f"kc{kc}")
        mf = []
        for k in range(4):
            for mi in range(4):
                d = ACC + (k*4 + mi)*4
                c = "0" if kc == 0 else q4(d)
                mf.append(f"{MF} {q4(d)}, a[{32*sl+4*mi}:{32*sl+4*mi+3}], a[{32*sl+16+4*k}:{32*sl+16+4*k+3}], {c}")
        ld = loads(kc+7) if kc + 7 <= 13 else []
        for i, m in enumerate(mf):
            A(m)
            if ld and i % 2 == 1: A(ld.pop(0))
    A.stamp("loopend")
    for k in range(1, 4):
        for mi in range(4):
            d = ACC + (k*4 + mi)*4
            A(f"ds_write_b128 v{vWk[k]}, {q4(d)} offset:{1024*mi}")
    U = 32
    for r in range(8): A(f"v_lshlrev_b32 v{U+2*r}, 16, v{RES+r}", f"v_and_b32 v{U+2*r+1}, 0xffff0000, v{RES+r}")
    A("s_waitcnt lgkmcnt(0)", "s_barrier")
    A.stamp("bar")
    for k in range(3):
        for mi in range(4):
            r = RD + (k*4 + mi)*4
            A(f"ds_read_b128 {q4(r)}, v{vRd} offset:{4096*k + 1024*mi}")
    for k in range(3):
        A(f"s_waitcnt lgkmcnt({8 - 4*k})")
        for mi in range(4):
            d = ACC + 4*mi; r = RD + (k*4 + mi)*4
            for e in range(4): A(f"v_add_f32 v{d+e}, v{d+e}, v{r+e}")
    if mode == 1:
        for i in range(16): A(f"v_add_f32 v{ACC+i}, v{ACC+i}, v{U+i}")
    Rg = lambda m, jj: ACC + 4*m + jj
    for jj in range(4): A(f"v_permlane32_swap_b32 v{Rg(0,jj)}, v{Rg(2,jj)}", f"v_permlane32_swap_b32 v{Rg(1,jj)}, v{Rg(3,jj)}")
    for jj in range(4): A(f"v_permlane16_swap_b32 v{Rg(0,jj)}, v{Rg(1,jj)}", f"v_permlane16_swap_b32 v{Rg(2,jj)}, v{Rg(3,jj)}")
    if mode == 0:
        for i in range(16): A(f"v_add_f32 v{ACC+i}, v{ACC+i}, v{U+i}")
    O = 48
    for r in range(8): A(f"v_cvt_pk_bf16_f32 v{O+r}, v{ACC+2*r}, v{ACC+2*r+1}")
    if mode == 0:
        sadd64(A, sO, WS, OFF["ZA"])
        A(f"global_store_dwordx4 v{vR}, {q4(O)}, s[{sO}:{sO+1}]{SC1}", f"global_store_dwordx4 v{vR}, {q4(O+4)}, s[{sO}:{sO+1}] offset:16{SC1}")
        SQ = 96
        for i in range(16): A(f"v_mul_f32 v{SQ+i}, v{ACC+i}, v{ACC+i}")
        A(f"s_lshl_b32 s{t0}, s{sCT}, 2", f"s_add_u32 s{t0}, s{t0}, s{sW}", f"s_cmp_eq_u32 s{t0}, 31", f"s_cbranch_scc0 {n}_nomask",
          f"v_cmp_eq_u32 vcc, 15, v{vL}")
        for i in range(16): A(f"v_cndmask_b32 v{SQ+i}, v{SQ+i}, 0, vcc" if False else f"v_cndmask_b32_e64 v{SQ+i}, v{SQ+i}, 0, vcc")
        A.label(f"{n}_nomask")
        D = lambda dst, src, ctrl, bm: f"v_add_f32_dpp v{dst}, v{src}, v{src} {ctrl} row_mask:0xf bank_mask:{bm}"
        for i in range(8): A(D(SQ+i, SQ+i, "row_mirror", "0x3"))
        for i in range(8): A(D(SQ+i, SQ+8+i, "row_mirror", "0xc"))
        for i in range(4): A(D(SQ+i, SQ+i, "row_half_mirror", "0x5"))
        for i in range(4): A(D(SQ+i, SQ+4+i, "row_half_mirror", "0xa"))
        for i in range(4): A(D(SQ+i, SQ+i, "quad_perm:[2,3,0,1]", "0xf"))
        for i in range(4): A(D(SQ+i, SQ+i, "quad_perm:[1,0,3,2]", "0xf"))
        A(f"v_and_b32 v12, 1, v0", f"v_cmp_eq_u32 vcc, 1, v12", f"v_cndmask_b32 v{SQ}, v{SQ}, v{SQ+1}, vcc", f"v_cndmask_b32 v{SQ+2}, v{SQ+2}, v{SQ+3}, vcc",
          f"v_and_b32 v12, 2, v0", f"v_cmp_eq_u32 vcc, 2, v12", f"v_cndmask_b32 v{SQ}, v{SQ}, v{SQ+2}, vcc",
          f"v_lshlrev_b32 v12, 2, v0", f"ds_write_b32 v12, v{SQ} offset:49152", "s_waitcnt lgkmcnt(0)", "s_barrier",
          f"s_cmp_eq_u32 s{sW}, 0", f"s_cbranch_scc0 {n}_end")
        for k in range(4): A(f"ds_read_b32 v{SQ+4+k}, v12 offset:{49152 + 256*k}")
        A(f"s_lshl_b32 s{t0}, s{sPT}, 8", f"s_add_u32 s{t0}, s{t0}, {OFF['SSQ']}", f"v_add_u32 v12, s{t0}, v12", "s_waitcnt lgkmcnt(0)",
          f"v_add_f32 v{SQ+4}, v{SQ+4}, v{SQ+5}", f"v_add_f32 v{SQ+6}, v{SQ+6}, v{SQ+7}", f"v_add_f32 v{SQ+4}, v{SQ+4}, v{SQ+6}",
          f"global_atomic_add_f32 v12, v{SQ+4}, s[{WS}:{WS+1}]")
    else:
        A(f"global_store_dwordx4 v12, {q4(O)}, s[{OUT}:{OUT+1}]{SC1}", f"global_store_dwordx4 v12, {q4(O+4)}, s[{OUT}:{OUT+1}] offset:16{SC1}")
    A.finish(n)
    return dict(name=f"down{mode}_kernel", lines=A.lines, vgpr=176 + 256, accum=176, sgpr=64, lds=49152 + 1024, grid=256, block=256)

def gen_down():
    return [gen_down1(0), gen_down1(1)]
```

```python
from asmgen import *
from gen import *

def weave(mf, fill, per=2, start=0):
    out = []; f = list(fill)
    for i, m in enumerate(mf):
        out.append(m)
        if i >= start:
            for _ in range(per):
                if f: out.append(f.pop(0))
    return out + f

def gen_fft():
    A = Asm(); n = "fft"
    sW, sZ, sO, sSS, sWF, t0, t1 = 3, 24, 26, 28, 30, 32, 33
    vLane, vQ, vL = 2, 3, 4
    vZ, vS, vW, vR, vLA, vT0, vT1 = 5, 6, 7, 8, 9, 10, 11
    vTR = [12, 13, 14, 15]
    vM = 16
    ZR, ZI, SSQ, WF, RES = 20, 24, 28, 36, 44
    C64, S64, N64 = [52, 64], [56, 68], [60, 72]
    C32, S32, N32 = [76, 80], [84, 88], [92, 96]
    TC, TS = 100, 108
    AF = 116
    ACR, ACI = [148, 152], [156, 160]
    BR, BI = 164, 168
    XR, XI = [172, 176], [180, 184]
    WRu, WIu = 188, 196
    YR, YI = 204, 208
    OR_, OI = [212, 216], [220, 224]
    TMP = 228
    KC = 18
    prologue(A, n, 256)
    A(f"v_lshrrev_b32 v1, 6, v0", f"v_and_b32 v{vLane}, 63, v0", f"v_readfirstlane_b32 s{sW}, v1",
      f"v_bfe_u32 v{vQ}, v0, 4, 2", f"v_and_b32 v{vL}, 15, v0",
      f"v_lshlrev_b32 v{vZ}, 4, v0", f"v_lshlrev_b32 v{vS}, 5, v0",
      f"v_lshl_add_u32 v17, v1, 4, v{vL}", f"v_lshlrev_b32 v{vW}, 7, v17", f"v_lshl_add_u32 v{vW}, v{vQ}, 5, v{vW}",
      f"v_and_b32 v18, 1, v{vQ}", f"v_lshlrev_b32 v18, 3, v18", f"v_lshl_add_u32 v{vR}, v{vL}, 4, v18",
      f"v_lshrrev_b32 v18, 1, v{vQ}", f"v_lshl_add_u32 v{vR}, v18, 8, v{vR}",
      f"v_and_b32 v18, 1, v1", f"v_lshl_add_u32 v{vR}, v18, 9, v{vR}",
      f"v_lshrrev_b32 v18, 1, v1", f"v_lshl_add_u32 v{vR}, v18, 10, v{vR}",
      f"s_lshl_b32 s{t0}, s2, 13",
      "s_waitcnt lgkmcnt(0)")
    A.stamp("kernarg")
    A(f"s_add_u32 s{t1}, s{t0}, {OFF['ZA'] + 4096}"); sadd64(A, sZ, WS, f"s{t1}")
    sadd64(A, sSS, WS, OFF["SSQ"])
    A(f"global_load_dwordx4 v[{SSQ}:{SSQ+3}], v{vS}, s[{sSS}:{sSS+1}]",
      f"global_load_dwordx4 v[{SSQ+4}:{SSQ+7}], v{vS}, s[{sSS}:{sSS+1}] offset:16",
      f"global_load_dwordx4 v[{ZR}:{ZR+3}], v{vZ}, s[{sZ}:{sZ+1}] offset:-4096",
      f"global_load_dwordx4 v[{ZI}:{ZI+3}], v{vZ}, s[{sZ}:{sZ+1}]")
    A(f"s_add_u32 s{t1}, s{t0}, {OFF['WF']}"); sadd64(A, sWF, WS, f"s{t1}")
    A(f"global_load_dwordx4 v[{WF}:{WF+3}], v{vW}, s[{sWF}:{sWF+1}]",
      f"global_load_dwordx4 v[{WF+4}:{WF+7}], v{vW}, s[{sWF}:{sWF+1}] offset:16")
    for pl in range(2):
        for nt in range(2):
            r = RES + 4*pl + 2*nt
            A(f"global_load_dwordx2 v[{r}:{r+1}], v{vR}, s[{sZ}:{sZ+1}] offset:{-4096 + 4096*pl + 2048*nt}")
    sadd64(A, sO, sZ, OFF["ZB"] - OFF["ZA"])
    A.stamp("issued")
    A(f"v_bfe_i32 v{vM}, v0, 0, 1", f"v_and_b32 v{vM}, 0x80008000, v{vM}",
      f"v_cvt_f32_u32 v17, v17",
      f"v_cvt_f32_u32 v19, v{vQ}")
    T = AF
    A(f"v_mul_f32 v18, {fl(1/64)}, v17", f"v_mul_f32 v{T}, {fl(8.0)}, v19", f"v_mul_f32 v{T}, v{T}, v18")
    for e in range(1, 8): A(f"v_add_f32 v{T+e}, v{T+e-1}, v18")
    for e in range(8): A(f"v_cos_f32 v{T+8+e}, v{T+e}", f"v_sin_f32 v{T+16+e}, v{T+e}")
    for r in range(4):
        A(f"v_cvt_pk_bf16_f32 v{C64[0]+r}, v{T+8+2*r}, v{T+9+2*r}", f"v_cvt_pk_bf16_f32 v{S64[0]+r}, v{T+16+2*r}, v{T+17+2*r}")
    for r in range(4):
        A(f"v_xor_b32 v{N64[0]+r}, 0x80008000, v{S64[0]+r}", f"v_xor_b32 v{C64[1]+r}, v{vM}, v{C64[0]+r}",
          f"v_xor_b32 v{S64[1]+r}, v{vM}, v{S64[0]+r}")
    for r in range(4): A(f"v_xor_b32 v{N64[1]+r}, v{vM}, v{N64[0]+r}")
    A(f"v_mul_f32 v18, {fl(1/2048)}, v17", f"v_mul_f32 v{T}, {fl(4.0)}, v19", f"v_mul_f32 v{T}, v{T}, v18")
    for i in range(1, 8):
        mt, jj = i >> 2, i & 3
        if i == 4: A(f"v_fma_f32 v{T+4}, v18, {fl(16.0)[0:0] or 'v' + str(T+8)}, v{T}" if False else f"v_mul_f32 v{T+8}, {fl(16.0)}, v18", f"v_add_f32 v{T+4}, v{T}, v{T+8}")
        else: A(f"v_add_f32 v{T+i}, v{T+i-1}, v18")
    for i in range(8): A(f"v_cos_f32 v{TC+i}, v{T+i}", f"v_sin_f32 v{TS+i}, v{T+i}")
    A(f"v_cvt_f32_u32 v18, v{vL}", f"v_mul_f32 v18, {fl(1/32)}, v18", f"v_mul_f32 v{T}, {fl(4.0)}, v19", f"v_mul_f32 v{T}, v{T}, v18")
    for e in range(1, 4): A(f"v_add_f32 v{T+e}, v{T+e-1}, v18")
    for e in range(4): A(f"v_cos_f32 v{T+8+e}, v{T+e}", f"v_sin_f32 v{T+16+e}, v{T+e}")
    for r in range(2):
        A(f"v_cvt_pk_bf16_f32 v{C32[0]+r}, v{T+8+2*r}, v{T+9+2*r}", f"v_cvt_pk_bf16_f32 v{S32[0]+r}, v{T+16+2*r}, v{T+17+2*r}")
    for r in range(2):
        A(f"v_xor_b32 v{C32[0]+2+r}, v{vM}, v{C32[0]+r}", f"v_xor_b32 v{S32[0]+2+r}, v{vM}, v{S32[0]+r}")
    for r in range(4):
        A(f"v_xor_b32 v{C32[1]+r}, 0x80000000, v{C32[0]+r}", f"v_xor_b32 v{S32[1]+r}, 0x80000000, v{S32[0]+r}",
          f"v_xor_b32 v{N32[0]+r}, 0x80008000, v{S32[0]+r}")
    for r in range(4): A(f"v_xor_b32 v{N32[1]+r}, 0x80000000, v{N32[0]+r}")
    A(f"v_lshlrev_b32 v{vLA}, 4, v{vLane}",
      f"v_lshl_add_u32 v17, v1, 4, v{vL}", f"v_bfe_u32 v18, v17, 1, 3", f"v_xor_b32 v18, v18, v{vQ}",
      f"v_lshlrev_b32 v18, 3, v18", f"v_lshl_add_u32 v{vT0}, v17, 6, v18", f"v_add_u32 v{vT0}, 8192, v{vT0}",
      f"v_xor_b32 v{vT1}, 32, v{vT0}",
      f"v_bfe_u32 v17, v0, 2, 2", f"v_and_b32 v18, 3, v0",
      f"v_lshl_add_u32 v19, v{vQ}, 3, v17", f"v_lshlrev_b32 v19, 6, v19",
      f"v_lshrrev_b32 v17, 1, v17", f"v_xor_b32 v18, v18, v17",
      f"v_and_b32 v17, 1, v{vQ}", f"v_lshlrev_b32 v17, 2, v17", f"v_xor_b32 v18, v18, v17",
      f"v_lshl_add_u32 v19, v18, 3, v19", f"v_add_u32 v{vTR[0]}, 8192, v19",
      f"v_xor_b32 v{vTR[1]}, {256 + 16}, v{vTR[0]}", f"v_xor_b32 v{vTR[2]}, 32, v{vTR[0]}", f"v_xor_b32 v{vTR[3]}, 32, v{vTR[1]}",
      f"v_mov_b32 v{KC}, {fl(8192.0)}", f"v_mov_b32 v{KC+1}, {fl(1e-5 * 2**22)}")
    A.stamp("consts")
    A("s_waitcnt vmcnt(8)")
    A.stamp("ssq")
    RS = TMP
    for r in range(4):
        A(f"v_pk_fma_f32 v[{RS+2*r}:{RS+2*r+1}], v[{SSQ+2*r}:{SSQ+2*r+1}], v[{KC}:{KC+1}], v[{KC}:{KC+1}] op_sel:[0,0,1] op_sel_hi:[1,0,1]")
    for e in range(8): A(f"v_rsq_f32 v{RS+e}, v{RS+e}")
    A("s_waitcnt vmcnt(6)", "s_cmp_eq_u32 s2, 255", f"s_cbranch_scc0 {n}_nz")
    for r in range(4): A(f"v_mov_b32 v{ZI+r}, 0")
    A.label(f"{n}_nz")
    for pl, Z in enumerate((ZR, ZI)):
        U = AF + 8*pl
        for r in range(4): A(f"v_lshlrev_b32 v{U+2*r}, 16, v{Z+r}", f"v_and_b32 v{U+2*r+1}, 0xffff0000, v{Z+r}")
        for r in range(4): A(f"v_pk_mul_f32 v[{U+2*r}:{U+2*r+1}], v[{U+2*r}:{U+2*r+1}], v[{RS+2*r}:{RS+2*r+1}]")
        for r in range(4): A(f"v_cvt_pk_bf16_f32 v{Z+r}, v{U+2*r}, v{U+2*r+1}")
        A(f"ds_write_b128 v{vZ}, v[{Z}:{Z+3}] offset:{4096*pl}")
    A("s_waitcnt lgkmcnt(0)", "s_barrier")
    A.stamp("bar1")
    def af(pl, mt, ks): return AF + 4*(4*mt + 2*ks + pl)
    for mt in range(2):
        for ks in range(2):
            for pl in range(2):
                r = af(pl, mt, ks)
                A(f"ds_read_b128 v[{r}:{r+3}], v{vLA} offset:{4096*pl + 1024*ks + 2048*mt}")
    def q4(b): return f"v[{b}:{b+3}]"
    def p2(b): return f"v[{b}:{b+1}]"
    def s1(mt):
        L = []
        for ks in range(2):
            c0 = lambda d: "0" if ks == 0 else q4(d)
            L += [f"{MF} {q4(ACR[mt])}, {q4(af(0,mt,ks))}, {q4(C64[ks])}, {c0(ACR[mt])}",
                  f"{MF} {q4(ACI[mt])}, {q4(af(1,mt,ks))}, {q4(C64[ks])}, {c0(ACI[mt])}",
                  f"{MF} {q4(ACR[mt])}, {q4(af(1,mt,ks))}, {q4(S64[ks])}, {q4(ACR[mt])}",
                  f"{MF} {q4(ACI[mt])}, {q4(af(0,mt,ks))}, {q4(N64[ks])}, {q4(ACI[mt])}"]
        return L
    def unpack(dst, src, nreg):
        L = []
        for r in range(nreg): L += [f"v_lshlrev_b32 v{dst+2*r}, 16, v{src+r}", f"v_and_b32 v{dst+2*r+1}, 0xffff0000, v{src+r}"]
        return L
    def cmul(dr, di, c, s, conj, outr, outi, tmp):
        L = []
        for p in range(2):
            a, b, cc, ss = dr+2*p, di+2*p, c+2*p, s+2*p
            t = tmp + 8*p
            L += [f"v_pk_mul_f32 {p2(t)}, {p2(b)}, {p2(ss)}", f"v_pk_mul_f32 {p2(t+2)}, {p2(a)}, {p2(ss)}"]
            if not conj:
                L += [f"v_pk_fma_f32 {p2(t+4)}, {p2(a)}, {p2(cc)}, {p2(t)}",
                      f"v_pk_fma_f32 {p2(t+6)}, {p2(b)}, {p2(cc)}, {p2(t+2)} neg_lo:[0,0,1] neg_hi:[0,0,1]"]
            else:
                L += [f"v_pk_fma_f32 {p2(t+4)}, {p2(a)}, {p2(cc)}, {p2(t)} neg_lo:[0,0,1] neg_hi:[0,0,1]",
                      f"v_pk_fma_f32 {p2(t+6)}, {p2(b)}, {p2(cc)}, {p2(t+2)}"]
        for p in range(2):
            t = tmp + 8*p
            L += [f"v_cvt_pk_bf16_f32 v{outr+p}, v{t+4}, v{t+5}", f"v_cvt_pk_bf16_f32 v{outi+p}, v{t+6}, v{t+7}"]
        return L
    TA, TB = TMP, AF
    TMP2 = 188 + 16 + 40
    TMP2 = 244 - 16
    m0 = s1(0); m1 = s1(1)
    A("s_waitcnt lgkmcnt(6)", *m0[:4], "s_waitcnt lgkmcnt(4)", *m0[4:])
    fill = ["s_waitcnt vmcnt(4)"] + unpack(WRu, WF, 4)[:5] + cmul(ACR[0], ACI[0], TC, TS, False, BR, BI, TMP)
    A("s_waitcnt lgkmcnt(2)", *weave(m1[:4], fill[:6 + 2], per=2), "s_waitcnt lgkmcnt(0)", *weave(m1[4:], fill[8:], per=2))
    rest = unpack(WRu, WF, 4)[5:] + unpack(WIu, WF+4, 4)
    A(*rest[:8])
    A(*cmul(ACR[1], ACI[1], TC+4, TS+4, False, BR+2, BI+2, TMP))
    A.stamp("st1")
    def s2(mt):
        return [f"{MF} {q4(XR[mt])}, {q4(C32[mt])}, {q4(BR)}, 0", f"{MF} {q4(XI[mt])}, {q4(C32[mt])}, {q4(BI)}, 0",
                f"{MF} {q4(XR[mt])}, {q4(S32[mt])}, {q4(BI)}, {q4(XR[mt])}", f"{MF} {q4(XI[mt])}, {q4(N32[mt])}, {q4(BR)}, {q4(XI[mt])}"]
    A(*weave(s2(0), rest[8:], per=2))
    ru = ["s_waitcnt vmcnt(0)"]
    for pl in range(2):
        for nt in range(2):
            ru += unpack((OR_, OI)[pl][nt], RES + 4*pl + 2*nt, 2)
    A(*weave(s2(1), ru[:9], per=2))
    A(*ru[9:13])
    A(*cmul(XR[0], XI[0], WRu, WIu, True, YR, YI, TMP))
    A(*cmul(XR[1], XI[1], WRu+4, WIu+4, True, YR+2, YI+2, TMP))
    A.stamp("st2")
    def s3(mt):
        return [f"{MF} {q4(ACR[mt])}, {q4(C32[mt])}, {q4(YR)}, 0", f"{MF} {q4(ACI[mt])}, {q4(C32[mt])}, {q4(YI)}, 0",
                f"{MF} {q4(ACR[mt])}, {q4(N32[mt])}, {q4(YI)}, {q4(ACR[mt])}", f"{MF} {q4(ACI[mt])}, {q4(S32[mt])}, {q4(YR)}, {q4(ACI[mt])}"]
    A(*s3(0))
    A(*weave(s3(1), ru[13:], per=2))
    for mt in range(2):
        ur, ui = BR + 2*mt, BI + 2*mt
        A(*cmul(ACR[mt], ACI[mt], TC+4*mt, TS+4*mt, True, ur, ui, TMP))
        va = vT1 if mt else vT0
        A(f"ds_write_b64 v{va}, {p2(ur)}", f"ds_write_b64 v{va}, {p2(ui)} offset:4096")
    A("s_waitcnt lgkmcnt(0)", "s_barrier")
    A.stamp("bar2")
    def bf(pl, nt, ks): return AF + 4*(4*nt + 2*ks + pl)
    def trreads(nt, ks):
        L = []
        for pl in range(2):
            for h in range(2):
                r = bf(pl, nt, ks) + 2*h
                L.append(f"ds_read_b64_tr_b16 {p2(r)}, v{vTR[2*nt+h]} offset:{4096*pl + 2048*ks}")
        return L
    A(*trreads(0, 0), *trreads(0, 1), *trreads(1, 0))
    def fin(pl, nt, ks):
        if pl == 0:
            return [f"{MF} {q4(OR_[nt])}, {q4(C64[ks])}, {q4(bf(0,nt,ks))}, {q4(OR_[nt])}",
                    f"{MF} {q4(OR_[nt])}, {q4(N64[ks])}, {q4(bf(1,nt,ks))}, {q4(OR_[nt])}"]
        return [f"{MF} {q4(OI[nt])}, {q4(C64[ks])}, {q4(bf(1,nt,ks))}, {q4(OI[nt])}",
                f"{MF} {q4(OI[nt])}, {q4(S64[ks])}, {q4(bf(0,nt,ks))}, {q4(OI[nt])}"]
    A("s_cmp_eq_u32 s2, 255", f"s_cbranch_scc1 {n}_last")
    A("s_waitcnt lgkmcnt(8)", *weave(fin(0, 0, 0) + fin(1, 0, 0), trreads(1, 1), per=1))
    A("s_waitcnt lgkmcnt(8)", *fin(0, 0, 1), *fin(1, 0, 1))
    A("s_waitcnt lgkmcnt(4)", *fin(0, 1, 0), *fin(1, 1, 0))
    A("s_waitcnt lgkmcnt(0)", *fin(0, 1, 1), *fin(1, 1, 1))
    A(f"s_branch {n}_out")
    A.label(f"{n}_last")
    A("s_waitcnt lgkmcnt(8)", *trreads(1, 1), "s_waitcnt lgkmcnt(0)")
    for nt in range(2):
        for ks in range(2): A(*fin(0, nt, ks))
    A.label(f"{n}_out")
    for nt in range(2):
        for pl in range(2):
            o = (OR_, OI)[pl][nt]; r = TMP + 2*(2*nt + pl)
            A(f"v_cvt_pk_bf16_f32 v{r}, v{o}, v{o+1}", f"v_cvt_pk_bf16_f32 v{r+1}, v{o+2}, v{o+3}",
              f"global_store_dwordx2 v{vR}, {p2(r)}, s[{sO}:{sO+1}] offset:{-4096 + 4096*pl + 2048*nt}{SC1}")
    A.finish(n)
    return dict(name="fft_kernel", lines=A.lines, vgpr=248, accum=248, sgpr=64, lds=16384, grid=256, block=256)
```

```python
from asmgen import *
from gen import *

import os
def gen_glu(R=4):
    X = os.environ.get("GLUX", "")
    A = Asm(); n = "glu"
    sW, sPH, sWFv, sRT, sJ = 3, 24, 25, 26, 27
    sZ, sWp, sMZ, sMW, t0, t1, sHO = 28, 30, 32, 33, 34, 35, 36
    vLane, vQ, vL, vZo, vWo, vA = 2, 3, 4, 5, 6, 7
    vB = [8, 9, 10, 11]
    vSS, vMask = 12, 13
    AFR, BFR, ACC = [64, 80], [96, 112], 128
    ZS = lambda s: (s % R) * 8192
    WB = R * 8192
    WSL = lambda s: (s % R) * 16384
    STAT = WB + R * 16384
    q4 = lambda b: f"v[{b}:{b+3}]"
    p2 = lambda b: f"v[{b}:{b+1}]"
    prologue(A, n, 256)
    A(f"v_lshrrev_b32 v1, 6, v0", f"v_and_b32 v{vLane}, 63, v0", f"v_readfirstlane_b32 s{sW}, v1",
      f"v_bfe_u32 v{vQ}, v0, 4, 2", f"v_and_b32 v{vL}, 15, v0",
      f"s_and_b32 s{t0}, s2, 1", f"s_lshl_b32 s{t0}, s{t0}, 3", f"s_bfe_u32 s{t1}, s2, 0x30003", f"s_add_u32 s{sRT}, s{t0}, s{t1}",
      f"s_bfe_u32 s{t0}, s2, 0x20001", f"s_lshl_b32 s{t0}, s{t0}, 2", f"s_lshr_b32 s{t1}, s2, 6", f"s_add_u32 s{sJ}, s{t0}, s{t1}",
      f"s_lshr_b32 s{sPH}, s{sW}, 2", f"s_and_b32 s{sWFv}, s{sW}, 3",
      f"s_bfe_u32 s{t0}, s{sW}, 0x10001", f"s_lshl_b32 s{t0}, s{t0}, 2",
      f"v_or_b32 v14, s{t0}, v{vQ}", f"v_lshlrev_b32 v14, 1, v14", f"v_xor_b32 v14, v14, v{vL}", f"v_lshlrev_b32 v14, 4, v14",
      f"s_lshl_b32 s{t0}, s{sW}, 2", f"v_add_u32 v15, s{t0}, v{vQ}", f"v_lshl_add_u32 v{vZo}, v15, 12, v14",
      f"v_lshlrev_b32 v{vWo}, 4, v{vLane}",
      f"s_lshl_b32 s{sMZ}, s{sW}, 10", f"s_lshl_b32 s{sMW}, s{sW}, 11", f"s_add_u32 s{sMW}, s{sMW}, {WB}",
      f"s_lshl_b32 s{t0}, s{sRT}, 8", f"s_add_u32 s{t0}, s{t0}, {OFF['ZB']}",
      f"s_lshl_b32 s{t1}, s{sJ}, 18", f"s_add_u32 s{t1}, s{t1}, {OFF['W13']}", f"s_lshl_b32 s{sHO}, s{sW}, 11", f"s_add_u32 s{t1}, s{t1}, s{sHO}",
      "s_waitcnt lgkmcnt(0)")
    A.stamp("kernarg")
    sadd64(A, sZ, WS, f"s{t0}"); sadd64(A, sWp, WS, f"s{t1}")
    def dma(s):
        return [f"s_add_u32 m0, s{sMZ}, {ZS(s)}", "DMAZ", f"s_add_u32 m0, s{sMW}, {WSL(s)}", "DMAW0", "DMAW1",
                f"s_add_u32 s{sZ}, s{sZ}, 131072", f"s_addc_u32 s{sZ+1}, s{sZ+1}, 0",
                f"s_add_u32 s{sWp}, s{sWp}, 16384", f"s_addc_u32 s{sWp+1}, s{sWp+1}, 0"]
    def fixdma(L):
        m = {"DMAZ": f"global_load_lds_dwordx4 v{vZo}, s[{sZ}:{sZ+1}]",
             "DMAW0": f"global_load_lds_dwordx4 v{vWo}, s[{sWp}:{sWp+1}]",
             "DMAW1": f"global_load_lds_dwordx4 v{vWo}, s[{sWp}:{sWp+1}] offset:1024"}
        return [m.get(x, x) for x in L]
    for s in range(R): A(*fixdma(dma(s)))
    A.stamp("dmaissued")
    A(f"s_lshl_b32 s{t0}, s{sWFv}, 12", f"s_add_u32 s{t0}, s{t0}, {WB}", f"v_add_u32 v{vA}, s{t0}, v{vWo}",
      f"v_bfe_u32 v14, v0, 2, 2", f"v_lshl_add_u32 v15, v{vQ}, 3, v14", f"v_lshlrev_b32 v15, 8, v15",
      f"v_and_b32 v16, 1, v{vQ}", f"v_lshl_add_u32 v14, v16, 2, v14",
      f"s_lshl_b32 s{t0}, s{sPH}, 2", f"s_add_u32 s{t0}, s{t0}, s{sWFv}", f"v_xor_b32 v14, s{t0}, v14",
      f"v_lshl_add_u32 v15, v14, 5, v15", f"v_and_b32 v14, 3, v0", f"v_lshl_add_u32 v{vB[0]}, v14, 3, v15")
    for k in range(1, 4): A(f"v_xor_b32 v{vB[k]}, {32*k}, v{vB[0]}")
    A(f"v_mov_b32 v{vSS}, 0", f"v_cmp_eq_u32 vcc, 3, v{vQ}", f"v_mov_b32 v14, 0xffff", f"v_cndmask_b32 v{vMask}, -1, v14, vcc")
    for r in range(64): A(f"v_mov_b32 v{ACC+r}, 0")
    def reads(s):
        a, b = AFR[s & 1], BFR[s & 1]
        L = []
        L += [f"ds_read_b64_tr_b16 {p2(b+2*h)}, v{vB[0]} offset:{ZS(s) + 1024*h}" for h in range(2)]
        L += [f"ds_read_b128 {q4(a+4*t)}, v{vA} offset:{WSL(s) + 1024*t}" for t in range(4)]
        for k in range(1, 4):
            L += [f"ds_read_b64_tr_b16 {p2(b+4*k+2*h)}, v{vB[k]} offset:{ZS(s) + 1024*h}" for h in range(2)]
        return L
    A.stamp("prewait")
    A(f"s_waitcnt vmcnt({3*(R-1)})")
    A.stamp("data0")
    A("s_barrier", *reads(0))
    for s in range(16):
        a, b = AFR[s & 1], BFR[s & 1]
        if s in (1, 4, 8, 12): A.stamp(f"step{s}")
        mf = []
        for k in range(4):
            for t in range(4):
                d = ACC + (t*4 + k)*4
                mf.append(f"{MF} {q4(d)}, {q4(a+4*t)}, {q4(b+4*k)}, {q4(d)}")
        A("s_waitcnt lgkmcnt(0)", *mf[:3])
        if s < 15:
            if "d" not in X: A(f"s_waitcnt vmcnt({3*(min(15, s+R-1) - (s+1))})")
            if "b" not in X: A("s_barrier")
        other = []
        if s < 15 and "r" not in X: other += reads(s+1)
        st = [f"v_dot2_f32_bf16 v{vSS}, v{b+r}, v{b+r}, v{vSS}" for r in range(4)]
        if s == 15: st = st[:3] + [f"v_and_b32 v14, v{vMask}, v{b+3}", f"v_dot2_f32_bf16 v{vSS}, v14, v14, v{vSS}"]
        dm = fixdma(dma(s + R)) if s + R <= 15 else []
        if "d" in X: dm = []
        if "s" in X: st = []
        seq = []
        rd = list(other); dd = list(dm); ss = list(st)
        slots = 13
        for i in range(slots):
            grp = []
            if rd: grp.append(rd.pop(0))
            if i % 3 == 1 and ss: grp.append(ss.pop(0))
            if i in (2, 6, 9):
                while dd:
                    x = dd.pop(0); grp.append(x)
                    if x.startswith("global_load_lds"): break
            seq.append(grp)
        seq[-1] += rd + ss + dd
        for i, m in enumerate(mf[3:]):
            A(m, *seq[i])
    A.stamp("loopend")
    A(f"s_cmp_ge_u32 s{sJ}, 14", f"s_cbranch_scc1 {n}_x3")
    A(f"v_mov_b32 v14, v{vSS}", f"v_permlane32_swap_b32 v{vSS}, v14", f"v_add_f32 v{vSS}, v{vSS}, v14",
      f"v_mov_b32 v14, v{vSS}", f"v_permlane16_swap_b32 v{vSS}, v14", f"v_add_f32 v{vSS}, v{vSS}, v14",
      f"s_lshl_b32 s{t0}, s{sPH}, 2", f"s_add_u32 s{t0}, s{t0}, s{sWFv}", f"s_lshl_b32 s{t0}, s{t0}, 6", f"s_add_u32 s{t0}, s{t0}, {STAT}",
      f"v_lshl_add_u32 v15, v{vL}, 2, s{t0}",
      f"ds_write_b32 v15, v{vSS}", "s_waitcnt lgkmcnt(0)", "s_barrier")
    A.stamp("statbar")
    IR2, KR = 16, 24
    for k in range(4):
        A(f"v_xor_b32 v14, {64*k}, v15", f"ds_read_b32 v{IR2+2*k}, v14")
    A(f"s_lshl_b32 s{t0}, s{sRT}, 3", f"s_lshl_b32 s{t1}, s{sPH}, 2", f"s_add_u32 s{t0}, s{t0}, s{t1}", f"s_add_u32 s{t0}, s{t0}, s{sWFv}",
      f"s_lshl_b32 s{t1}, s{sJ}, 2", f"s_add_u32 s{t1}, s{t1}, s{sWFv}", f"s_lshl_b32 s{t1}, s{t1}, 10", f"s_add_u32 s{t1}, s{t1}, {OFF['H']}")
    sHk = [40, 41, 42, 43]
    for k in range(4):
        A(f"s_xor_b32 s{sHk[k]}, s{t0}, {k}", f"s_mul_i32 s{sHk[k]}, s{sHk[k]}, {56*1024}", f"s_add_u32 s{sHk[k]}, s{sHk[k]}, s{t1}")
    A(f"v_mov_b32 v32, {fl(1/512)}", f"v_mov_b32 v33, {fl(1e-5)}", "s_waitcnt lgkmcnt(0)")
    for k in range(4):
        A(f"v_fma_f32 v{IR2+2*k}, v{IR2+2*k}, v32, v33")
    for k in range(4):
        A(f"v_rsq_f32 v{KR+2*k}, v{IR2+2*k}")
    for k in range(4):
        A(f"v_mul_f32 v{KR+2*k}, {fl(-1.4426950408889634)}, v{KR+2*k}")
    TM = 192
    for k in range(4):
        T = TM + 16*(k & 1); O = 40 + 4*k
        prs = [(i, p) for i in range(2) for p in range(2)]
        g = lambda i, p: ACC + ((2*i)*4 + k)*4 + 2*p
        u = lambda i, p: ACC + ((2*i+1)*4 + k)*4 + 2*p
        for x, (i, p) in enumerate(prs):
            A(f"v_pk_mul_f32 {p2(T+2*x)}, {p2(g(i,p))}, {p2(KR+2*k)} op_sel_hi:[1,0]")
        for x in range(4):
            A(f"v_exp_f32 v{T+2*x}, v{T+2*x}", f"v_exp_f32 v{T+2*x+1}, v{T+2*x+1}")
        for x, (i, p) in enumerate(prs):
            A(f"v_pk_mul_f32 {p2(T+8+2*x)}, {p2(g(i,p))}, {p2(u(i,p))}")
        for x in range(4):
            A(f"v_pk_fma_f32 {p2(T+2*x)}, {p2(T+2*x)}, {p2(IR2+2*k)}, {p2(IR2+2*k)} op_sel_hi:[1,0,0]")
        for x in range(4):
            A(f"v_rcp_f32 v{T+2*x}, v{T+2*x}", f"v_rcp_f32 v{T+2*x+1}, v{T+2*x+1}")
        for x in range(4):
            A(f"v_pk_mul_f32 {p2(T+8+2*x)}, {p2(T+8+2*x)}, {p2(T+2*x)}")
        for x in range(4):
            A(f"v_cvt_pk_bf16_f32 v{O+x}, v{T+8+2*x}, v{T+9+2*x}")
        A(f"v_add_u32 v14, s{sHk[k]}, v{vWo}", f"global_store_dwordx4 v14, {q4(O)}, s[{WS}:{WS+1}]{SC1}")
    A(f"s_branch {n}_fin")
    A.label(f"{n}_x3")
    A(f"s_lshl_b32 s{t0}, s{sRT}, 3", f"s_lshl_b32 s{t1}, s{sPH}, 2", f"s_add_u32 s{t0}, s{t0}, s{t1}", f"s_add_u32 s{t0}, s{t0}, s{sWFv}",
      f"s_sub_u32 s{t1}, s{sJ}, 14", f"s_lshl_b32 s{t1}, s{t1}, 9", f"s_lshl_b32 s{sHO}, s{sWFv}, 7", f"s_add_u32 s{t1}, s{t1}, s{sHO}",
      f"s_add_u32 s{t1}, s{t1}, {OFF['X3']}",
      f"v_lshlrev_b32 v15, 10, v{vL}", f"v_lshl_add_u32 v15, v{vQ}, 4, v15")
    for k in range(4):
        A(f"s_xor_b32 s{sHO}, s{t0}, {k}", f"s_lshl_b32 s{sHO}, s{sHO}, 14", f"s_add_u32 s{sHO}, s{sHO}, s{t1}", f"v_add_u32 v14, s{sHO}, v15")
        for p in range(2):
            O = 40 + 8*(k & 1) + 4*p
            d0 = ACC + ((2*p)*4 + k)*4; d1 = ACC + ((2*p+1)*4 + k)*4
            A(f"v_cvt_pk_bf16_f32 v{O}, v{d0}, v{d0+1}", f"v_cvt_pk_bf16_f32 v{O+1}, v{d0+2}, v{d0+3}",
              f"v_cvt_pk_bf16_f32 v{O+2}, v{d1}, v{d1+1}", f"v_cvt_pk_bf16_f32 v{O+3}, v{d1+2}, v{d1+3}",
              f"global_store_dwordx4 v14, {q4(O)}, s[{WS}:{WS+1}] offset:{64*p}{SC1}")
    A.label(f"{n}_fin")
    A(f"s_lshl_b32 s{t0}, s2, 5", f"s_add_u32 s{t0}, s{t0}, {OFF['SSQ']}", f"v_lshl_add_u32 v14, v0, 2, s{t0}", "v_mov_b32 v15, 0",
      "v_cmp_gt_u32 vcc, 8, v0", "s_and_saveexec_b64 s[44:45], vcc", f"s_cbranch_execz {n}_end",
      f"global_store_dword v14, v15, s[{WS}:{WS+1}]{SC1}")
    A.finish(n)
    return dict(name="glu_kernel", lines=A.lines, vgpr=256, accum=256, sgpr=64, lds=STAT + 512, grid=256, block=512)
```

```python
from asmgen import *
from gen import *
import os

def hoist_m0(flat):
    out = list(flat)
    i = 0
    while i < len(out):
        if out[i].startswith("s_add_u32 m0"):
            j = i
            while j > 0 and not out[j-1].startswith("global_load_lds") and "m0" not in out[j-1]:
                out[j-1], out[j] = out[j], out[j-1]; j -= 1
                if out[j+1].startswith("v_mfma"): break
        i += 1
    return out

def gen_glu(R=4, DELTA=None):
    if DELTA is None: DELTA = int(os.environ.get("DELTA", "4"))
    X = os.environ.get("GLUX", "")
    A = Asm(); n = "glu"
    sW, sPH, sWFv, sRT, sJ = 3, 24, 25, 26, 27
    sZ, sWA, sWB, sMZ, sMA, sMT, t0, t1, t2 = 28, 30, 32, 34, 35, 36, 37, 38, 39
    sHk = [40, 41, 42, 43]; sEX = 44; sPF = 46; sM1, sM2, sM3 = 48, 50, 52; sWT = 54; sLAY = 60
    vLane, vQ, vL, vZo, vWo, vA = 2, 3, 4, 5, 6, 7
    vB = [8, 9, 10, 11]
    vStW, vMask, vAT, vPF, vPD = 12, 13, 16, 17, 18
    ST = 24
    AFR = [32, 48]; ACC = 64; GR = 128; OP = 132; TM = 148
    NB = DELTA + 2
    BFR = lambda u: 160 + 16 * (u % NB)
    assert 160 + 16*NB <= 256
    ZS = lambda s: (s % R) * 8192
    WBASE = R * 8192
    WSL = lambda s: (s % R) * 16384
    XA = WBASE + R * 16384
    STAT = XA + DELTA * 8192
    q4 = lambda b: f"v[{b}:{b+3}]"
    p2 = lambda b: f"v[{b}:{b+1}]"
    A(f"s_mov_b32 s{sLAY}, 0")
    A.label("glu_body")
    prologue(A, n, 256)
    A(f"v_lshrrev_b32 v1, 6, v0", f"v_and_b32 v{vLane}, 63, v0", f"v_readfirstlane_b32 s{sW}, v1",
      f"v_bfe_u32 v{vQ}, v0, 4, 2", f"v_and_b32 v{vL}, 15, v0",
      f"s_and_b32 s{t0}, s2, 1", f"s_lshl_b32 s{t0}, s{t0}, 3", f"s_bfe_u32 s{t1}, s2, 0x30003", f"s_add_u32 s{sRT}, s{t0}, s{t1}",
      f"s_bfe_u32 s{t0}, s2, 0x20001", f"s_lshl_b32 s{t0}, s{t0}, 2", f"s_lshr_b32 s{t1}, s2, 6", f"s_add_u32 s{sJ}, s{t0}, s{t1}",
      f"s_lshr_b32 s{sPH}, s{sW}, 2", f"s_and_b32 s{sWFv}, s{sW}, 3",
      f"s_bfe_u32 s{t0}, s{sW}, 0x10001", f"s_lshl_b32 s{t0}, s{t0}, 2",
      f"v_or_b32 v14, s{t0}, v{vQ}", f"v_lshlrev_b32 v14, 1, v14", f"v_xor_b32 v14, v14, v{vL}", f"v_lshlrev_b32 v14, 4, v14",
      f"s_lshl_b32 s{t0}, s{sW}, 2", f"v_add_u32 v15, s{t0}, v{vQ}", f"v_lshl_add_u32 v{vZo}, v15, 12, v14",
      f"v_lshlrev_b32 v{vWo}, 4, v{vLane}",
      f"s_lshl_b32 s{sMZ}, s{sW}, 10",
      f"s_lshr_b32 s{t0}, s{sW}, 1", f"s_lshl_b32 s{t0}, s{t0}, 2", f"s_and_b32 s{t1}, s{sW}, 1", f"s_add_u32 s{t2}, s{t0}, s{t1}", f"s_lshl_b32 s{t2}, s{t2}, 10",
      f"s_add_u32 s{sMA}, s{t2}, {WBASE}", f"s_add_u32 s{sMT}, s{sMZ}, {XA}",
      f"s_lshl_b32 s{t0}, s{sRT}, 8", f"s_add_u32 s{t0}, s{t0}, {OFF['ZB']}",
      f"s_lshl_b32 s{t1}, s{sJ}, 18", f"s_add_u32 s{t1}, s{t1}, {OFF['W13']}", f"s_add_u32 s{t1}, s{t1}, s{t2}",
      f"s_lshr_b32 s{sPF}, s2, 3", f"s_lshl_b32 s{sPF}, s{sPF}, 3", f"s_add_u32 s{sPF}, s{sPF}, s{sW}", f"s_lshl_b32 s{sPF}, s{sPF}, 13",
      f"s_lshl_b32 s{t2}, s{sLAY}, 21", f"s_add_u32 s{sPF}, s{sPF}, s{t2}", f"s_add_u32 s{sPF}, s{sPF}, {OFF['W2P'] + 4096}",
      f"v_lshrrev_b32 v{vPF}, 2, v{vLane}", f"v_lshl_add_u32 v{vPF}, v{vPF}, 7, s{sPF}",
      f"s_lshr_b32 s{t2}, s{sJ}, 1", f"s_cmp_eq_u32 s{t2}, 7", f"s_cselect_b32 s{t2}, 1, 0", f"s_cmp_gt_u32 s{t2}, s{sLAY}",
      "s_waitcnt lgkmcnt(0)", f"s_cbranch_scc1 {n}_skip")
    A.stamp("kernarg")
    sadd64(A, sZ, WS, f"s{t0}"); sadd64(A, sWA, WS, f"s{t1}"); sadd64(A, sWB, sWA, 2048); sadd64(A, sWT, sWA, 2048 + (16 - DELTA)*16384)
    def piece(kind, idx):
        if kind == "Z":
            return [f"s_add_u32 m0, s{sMZ}, {ZS(idx)}", f"global_load_lds_dwordx4 v{vZo}, s[{sZ}:{sZ+1}]",
                    f"s_add_u32 s{sZ}, s{sZ}, 131072", f"s_addc_u32 s{sZ+1}, s{sZ+1}, 0"]
        if kind == "A":
            return [f"s_add_u32 m0, s{sMA}, {WSL(idx)}", f"global_load_lds_dwordx4 v{vWo}, s[{sWA}:{sWA+1}]",
                    f"s_add_u32 s{sWA}, s{sWA}, 16384", f"s_addc_u32 s{sWA+1}, s{sWA+1}, 0"]
        if kind == "B":
            return [f"s_add_u32 m0, s{sMA}, {WSL(idx) + 2048}", f"global_load_lds_dwordx4 v{vWo}, s[{sWB}:{sWB+1}]",
                    f"s_add_u32 s{sWB}, s{sWB}, 16384", f"s_addc_u32 s{sWB+1}, s{sWB+1}, 0"]
        if kind == "T":
            return [f"s_add_u32 m0, s{sMT}, {idx*8192}", f"global_load_lds_dwordx4 v{vWo}, s[{sWT}:{sWT+1}]",
                    f"s_add_u32 s{sWT}, s{sWT}, 16384", f"s_addc_u32 s{sWT+1}, s{sWT+1}, 0"]
        if kind == "P":
            return [f"global_load_dword v{vPD}, v{vPF}, s[{WS}:{WS+1}] offset:{-4096 + 2048*idx}"]
    order = []
    for u in range(16):
        order += [("Z", u), ("A", u)] + ([("B", u)] if u >= DELTA else [])
    P0 = int(os.environ.get("P0", "6"))
    caps = [3]*DELTA + [4]*(16 - DELTA)
    if os.environ.get("CAPS"): caps = [int(c) for c in os.environ["CAPS"]]
    extras = {6: [("P", 0)], 7: [("P", 1)], 8: [("P", 2)], 9: [("P", 3)]}
    for i in range(DELTA): extras.setdefault(10 + i if DELTA <= 4 else 9 + i, []).append(("T", i))
    if "p" in X:
        for k in list(extras): extras[k] = [e for e in extras[k] if e[0] != "P"]
    sched = []; pos = P0
    for u in range(16):
        ex = extras.get(u, [])
        L = []
        while pos < len(order) and len(L) + len(ex) < max(caps[u], 3 + len(ex) if u >= DELTA else 0) and order[pos][1] <= u + R:
            L.append(order[pos]); pos += 1
        sched.append(L + ex)
    assert pos == len(order)
    issued = list(order[:P0])
    def outstanding_after(pred):
        last = max(i for i, p in enumerate(issued) if pred(p))
        return len(issued) - 1 - last
    for p in order[:P0]: A(*piece(*p))
    A.stamp("dmaissued")
    A(f"s_lshl_b32 s{t0}, s{sWFv}, 12", f"s_add_u32 s{t0}, s{t0}, {WBASE}", f"v_add_u32 v{vA}, s{t0}, v{vWo}",
      f"s_lshl_b32 s{t0}, s{sWFv}, 11", f"s_add_u32 s{t0}, s{t0}, {XA}", f"v_add_u32 v{vAT}, s{t0}, v{vWo}",
      f"v_bfe_u32 v14, v0, 2, 2", f"v_lshl_add_u32 v15, v{vQ}, 3, v14", f"v_lshlrev_b32 v15, 8, v15",
      f"v_and_b32 v19, 1, v{vQ}", f"v_lshl_add_u32 v14, v19, 2, v14",
      f"s_lshl_b32 s{t0}, s{sPH}, 2", f"s_add_u32 s{t0}, s{t0}, s{sWFv}", f"v_xor_b32 v14, s{t0}, v14",
      f"v_lshl_add_u32 v15, v14, 5, v15", f"v_and_b32 v14, 3, v0", f"v_lshl_add_u32 v{vB[0]}, v14, 3, v15")
    for k in range(1, 4): A(f"v_xor_b32 v{vB[k]}, {32*k}, v{vB[0]}")
    A(f"v_and_b32 v14, 3, v{vL}", f"v_cmp_eq_u32 s[{sM1}:{sM1+1}], 1, v14", f"v_cmp_eq_u32 s[{sM2}:{sM2+1}], 2, v14", f"v_cmp_eq_u32 s[{sM3}:{sM3+1}], 3, v14",
      f"s_lshl_b32 s{t0}, s{sW}, 6", f"s_add_u32 s{t0}, s{t0}, {STAT}", f"v_lshl_add_u32 v15, v{vL}, 2, s{t0}",
      f"v_lshlrev_b32 v19, 2, v{vLane}", f"v_add_u32 v19, {STAT + 512}, v19", f"v_lshrrev_b32 v14, 2, v{vL}", f"v_cmp_eq_u32 vcc, v14, v{vQ}",
      f"v_cndmask_b32 v{vStW}, v19, v15, vcc", f"v_mov_b32 v19, v15",
      f"s_cmp_ge_u32 s{sJ}, 14", f"s_cselect_b32 s{t0}, -1, 0xffff", f"v_mov_b32 v14, s{t0}", f"v_cmp_eq_u32 vcc, 3, v{vQ}", f"v_cndmask_b32 v{vMask}, -1, v14, vcc")
    vStR = 19
    def readsZ(u):
        b = BFR(u)
        return [f"ds_read_b64_tr_b16 {p2(b+4*k+2*h)}, v{vB[k]} offset:{ZS(u) + 1024*h}" for k in range(4) for h in range(2)]
    def reads(u):
        a = AFR[u & 1]
        z = readsZ(u)
        w = [f"ds_read_b128 {q4(a+4*t)}, v{vA} offset:{WSL(u) + 1024*t}" for t in range(4) if t < 2 or u >= DELTA]
        return z[:2] + w + z[2:]
    def treads(i):
        a = AFR[(16 + i) & 1]
        return [f"ds_read_b128 {q4(a+4*t)}, v{vAT} offset:{i*8192 + 1024*(t-2)}" for t in (2, 3)]
    acc = lambda t, k: ACC + (t*4 + k)*4
    first = set()
    def mfma(t, k, a, b):
        d = acc(t, k); c = q4(d) if (t, k) in first else "0"; first.add((t, k))
        return f"{MF} {q4(d)}, {q4(a+4*t)}, {q4(b+4*k)}, {c}"
    def haddr():
        L = [f"s_lshl_b32 s{t0}, s{sRT}, 3", f"s_lshl_b32 s{t1}, s{sPH}, 2", f"s_add_u32 s{t0}, s{t0}, s{t1}", f"s_add_u32 s{t0}, s{t0}, s{sWFv}",
             f"s_lshl_b32 s{t1}, s{sJ}, 2", f"s_add_u32 s{t1}, s{t1}, s{sWFv}", f"s_lshl_b32 s{t1}, s{t1}, 10", f"s_add_u32 s{t1}, s{t1}, {OFF['H']}"]
        for k in range(4):
            L += [f"s_xor_b32 s{sHk[k]}, s{t0}, {k}", f"s_mul_i32 s{sHk[k]}, s{sHk[k]}, {56*1024}", f"s_add_u32 s{sHk[k]}, s{sHk[k]}, s{t1}"]
        return L
    A(*haddr())
    A.stamp("prewait")
    A(f"s_waitcnt vmcnt({outstanding_after(lambda p: p == ('A', 0))})")
    A.stamp("data0")
    A("s_barrier", *reads(0))
    for u in range(16):
        a, b = AFR[u & 1], BFR(u)
        if u in (1, 4, 8, 12): A.stamp(f"step{u}")
        mf = [f"{MF} {q4(GR)}, {q4(b)}, {q4(b)}, {'0' if u == 0 else q4(GR)}"] if "s" not in X else []
        for k in range(4):
            mf += [mfma(t, k, a, b) for t in (0, 1)]
            if u >= DELTA: mf += [mfma(t, k, a, BFR(u - DELTA)) for t in (2, 3)]
        A("s_waitcnt lgkmcnt(0)")
        if u < 15:
            A(*mf[:3])
            need = lambda p: p[1] == u + 1 and p[0] in "ZAB"
            A(f"s_waitcnt vmcnt({outstanding_after(need)})", "s_barrier")
            rd = reads(u + 1); dd = list(sched[u]); issued += dd
            rest = mf[3:]
            ns = len(rest)
            slots = [[] for _ in rest]
            for i, x in enumerate(rd): slots[min(i * ns // len(rd), ns - 1)].append(x)
            for i, p in enumerate(dd): slots[min((2*i + 1) * ns // (2*len(dd)), ns - 1)] += piece(*p)
            flat = []
            for m, sl in zip(rest, slots): flat += [m] + sl
            A(*hoist_m0(flat))
        else:
            assert not sched[u]
            A(f"v_and_b32 v{b+3}, v{vMask}, v{b+3}")
            A(*mf[:6])
            A(f"v_cndmask_b32_e64 v14, v{GR}, v{GR+1}, s[{sM1}:{sM1+1}]", f"v_cndmask_b32_e64 v14, v14, v{GR+2}, s[{sM2}:{sM2+1}]",
              f"v_cndmask_b32_e64 v14, v14, v{GR+3}, s[{sM3}:{sM3+1}]", f"ds_write_b32 v{vStW}, v14", mf[6])
            N = outstanding_after(lambda p: p[0] == "T") if DELTA else 63
            A(f"s_waitcnt vmcnt({N}) lgkmcnt(0)", "s_barrier")
            rd = []
            for k in range(4): rd += [f"v_xor_b32 v14, {64*k}, v{vStR}" if k else "", f"ds_read_b32 v{ST+2*k}, v{14 if k else vStR}"]
            rd = [x for x in rd if x]
            A(*rd)
            if DELTA: A(*treads(0))
            rest = mf[7:]
            st = [[f"v_fma_f32 v{ST+2*k}, v{ST+2*k}, v20, v21" for k in range(4)],
                  [f"v_rsq_f32 v{ST+2*k+1}, v{ST+2*k}" for k in range(4)],
                  [f"v_mul_f32 v{ST+2*k+1}, {fl(-1.4426950408889634)}, v{ST+2*k+1}" for k in range(4)]]
            A(f"v_mov_b32 v20, {fl(1/512)}", f"v_mov_b32 v21, {fl(1e-5)}")
            nr = len(rest)
            A(*rest[:nr-4], f"s_waitcnt lgkmcnt({2 if DELTA else 0})", *st[0], rest[nr-4], *st[1], rest[nr-3], rest[nr-2], *st[2], rest[nr-1])
    A.stamp("loopend")
    def epi(i, ks, T):
        prs = [(k, p) for k in ks for p in range(2)]
        m = len(prs)
        g = lambda k, p: acc(2*i, k) + 2*p
        uu = lambda k, p: acc(2*i+1, k) + 2*p
        L = []
        for x, (k, p) in enumerate(prs): L.append(f"v_pk_mul_f32 {p2(T+2*x)}, {p2(g(k,p))}, {p2(ST+2*k)} op_sel:[0,1] op_sel_hi:[1,1]")
        for x in range(m): L += [f"v_exp_f32 v{T+2*x}, v{T+2*x}", f"v_exp_f32 v{T+2*x+1}, v{T+2*x+1}"]
        for x, (k, p) in enumerate(prs): L.append(f"v_pk_mul_f32 {p2(T+2*m+2*x)}, {p2(g(k,p))}, {p2(uu(k,p))}")
        for x, (k, p) in enumerate(prs): L.append(f"v_pk_fma_f32 {p2(T+2*x)}, {p2(T+2*x)}, {p2(ST+2*k)}, {p2(ST+2*k)} op_sel_hi:[1,0,0]")
        for x in range(m): L += [f"v_rcp_f32 v{T+2*x}, v{T+2*x}", f"v_rcp_f32 v{T+2*x+1}, v{T+2*x+1}"]
        for x in range(m): L.append(f"v_pk_mul_f32 {p2(T+2*m+2*x)}, {p2(T+2*m+2*x)}, {p2(T+2*x)}")
        for x, (k, p) in enumerate(prs): L.append(f"v_cvt_pk_bf16_f32 v{OP+4*k+2*i+p}, v{T+2*m+2*x}, v{T+2*m+2*x+1}")
        return L
    def tail(fill):
        mm = []
        for i in range(DELTA):
            a = AFR[(16 + i) & 1]; b = BFR(16 - DELTA + i)
            grp = [mfma(t, k, a, b) for k in range(4) for t in (2, 3)]
            mm.append(grp)
        tot = 8 * DELTA; f = list(fill); done = 0; nf = len(f)
        for i in range(DELTA):
            A("s_waitcnt lgkmcnt(0)")
            if i + 1 < DELTA: A(*treads(i + 1))
            for x, m in enumerate(mm[i]):
                A(m); done += 1
                while f and (nf - len(f)) < nf * done / tot: A(f.pop(0))
        A(*f)
    hstore = lambda k: [f"v_add_u32 v14, s{sHk[k]}, v{vWo}", f"global_store_dwordx4 v14, {q4(OP+4*k)}, s[{WS}:{WS+1}]{SC1}"]
    A(f"s_cmp_ge_u32 s{sJ}, 14", f"s_cbranch_scc1 {n}_x3")
    if DELTA:
        TA_ = [32 - 0, 48]
        fill = epi(0, [0], 32) + epi(0, [1], 48) + epi(0, [2], 32) + epi(0, [3], 48) if "e" in X else None
        if fill is None:
            a0, a1, a2, a3 = epi(0, [0], 32), epi(0, [1], 48), epi(0, [2], 32), epi(0, [3], 48)
            def zip2(x, y):
                o = []
                for p, q in zip(x, y): o += [p, q]
                return o
            fill = zip2(a0, a1) + zip2(a2, a3)
        tail(fill)
        A.stamp("tailend")
        for ks in ([0, 1], [2, 3]):
            A(*epi(1, ks, 160 + 16*(ks[0] >> 1)))
            for k in ks: A(*hstore(k))
    else:
        A.stamp("tailend")
        for k in range(4):
            T = 192 + 16*(k & 1)
            e0, e1 = epi(0, [k], T), epi(1, [k], T + 8)
            o = []
            for p, q in zip(e0, e1): o += [p, q]
            A(*o, *hstore(k))
    A(f"s_branch {n}_fin")
    A.label(f"{n}_x3")
    A(f"s_lshl_b32 s{t0}, s{sRT}, 3", f"s_lshl_b32 s{t1}, s{sPH}, 2", f"s_add_u32 s{t0}, s{t0}, s{t1}", f"s_add_u32 s{t0}, s{t0}, s{sWFv}",
      f"s_sub_u32 s{t1}, s{sJ}, 14", f"s_lshl_b32 s{t1}, s{t1}, 3", f"s_lshl_b32 s{t2}, s{sWFv}, 1", f"s_add_u32 s{t1}, s{t1}, s{t2}", f"s_lshl_b32 s{t1}, s{t1}, 10",
      f"s_add_u32 s{t1}, s{t1}, {OFF['X3']}")
    for k in range(4):
        A(f"s_xor_b32 s{sHk[k]}, s{t0}, {k}", f"s_lshl_b32 s{sHk[k]}, s{sHk[k]}, 14", f"s_add_u32 s{sHk[k]}, s{sHk[k]}, s{t1}")
    def x3(k, p):
        O = OP + 4*((2*k + p) & 3)
        d0, d1 = acc(2*p, k), acc(2*p+1, k)
        return [f"v_cvt_pk_bf16_f32 v{O}, v{d0}, v{d0+1}", f"v_cvt_pk_bf16_f32 v{O+1}, v{d0+2}, v{d0+3}",
                f"v_cvt_pk_bf16_f32 v{O+2}, v{d1}, v{d1+1}", f"v_cvt_pk_bf16_f32 v{O+3}, v{d1+2}, v{d1+3}",
                f"v_add_u32 v14, s{sHk[k]}, v{vWo}", f"global_store_dwordx4 v14, {q4(O)}, s[{WS}:{WS+1}] offset:{1024*p}{SC1}"]
    if DELTA:
        tail([x for k in range(4) for x in x3(k, 0)])
        for k in range(4): A(*x3(k, 1))
    else:
        for k in range(4):
            for p in range(2): A(*x3(k, p))
    A(f"s_branch {n}_fin")
    A.label(f"{n}_skip")
    for i in range(4): A(*piece("P", i))
    A.label(f"{n}_fin")
    A(f"s_lshl_b32 s{t0}, s2, 5", f"s_add_u32 s{t0}, s{t0}, {OFF['SSQ']}", f"v_lshl_add_u32 v14, v0, 2, s{t0}", "v_mov_b32 v15, 0",
      "v_cmp_gt_u32 vcc, 8, v0", f"s_and_saveexec_b64 s[{sEX}:{sEX+1}], vcc", f"s_cbranch_execz {n}_end",
      f"global_store_dword v14, v15, s[{WS}:{WS+1}]{SC1}")
    A.finish(n)
    lds = STAT + 512 + 256
    k0 = dict(name="glu0_kernel", lines=A.lines, vgpr=256, accum=256, sgpr=64, lds=lds, grid=256, block=512)
    k1 = dict(name="glu1_kernel", lines=[f"s_mov_b32 s{sLAY}, 1", "s_branch glu_body"], vgpr=256, accum=256, sgpr=64, lds=lds, grid=256, block=512)
    return [k0, k1]
```

```python
from asmgen import *
from gen import *

def gen_k1b(SC="sc1"):
    A = Asm(); n = "k1"
    sW, sP, sHF, sROLE, sK1 = 3, 24, 25, 26, 27
    sB, sSTR, sM, sMI, sT = 28, 30, 31, 32, 33
    sO, sO2 = 34, 36
    sFP = 38
    t0, t1, t2, t3 = 40, 41, 42, 43
    sEX = 44
    vLane, vQ, vL, vDA = 2, 3, 4, 5
    vR = [6, 7, 8, 9]
    vM1, vM2, vM3 = [10, 11], 12, [13, 14]
    vSc = [15, 16]
    vFW, vFT, vFW2, vFO = 17, 18, 19, 20
    FIL = 24
    FB = lambda mi, j: 32 + 16*mi + 4*j
    FD = lambda b, mi: 64 + 8*b + 4*mi
    IN = lambda b, nt: 80 + 16*b + 4*nt
    ACC = lambda nt, mi: 112 + 8*nt + 4*mi
    T = 144
    FIL1, FIL2, TRS = 65536, 73728, 81920
    q4 = lambda b: f"v[{b}:{b+3}]"
    p2 = lambda b: f"v[{b}:{b+1}]"
    sc = (" " + SC) if SC else ""
    prologue(A, n, 256)
    A(f"v_lshrrev_b32 v1, 6, v0", f"v_and_b32 v{vLane}, 63, v0", f"v_readfirstlane_b32 s{sW}, v1",
      f"v_bfe_u32 v{vQ}, v0, 4, 2", f"v_and_b32 v{vL}, 15, v0",
      f"s_and_b32 s{t0}, s2, 7", f"s_lshr_b32 s{t1}, s2, 4", f"s_lshl_b32 s{t1}, s{t1}, 3", f"s_add_u32 s{sP}, s{t0}, s{t1}",
      f"s_bfe_u32 s{sHF}, s2, 0x10003", f"s_lshr_b32 s{sK1}, s2, 2",
      f"v_lshrrev_b32 v21, 3, v{vLane}", f"v_and_b32 v22, 7, v{vLane}",
      f"s_and_b32 s{t0}, s{sW}, 3", f"s_mul_i32 s{t0}, s{t0}, {8*32896}", f"s_mul_i32 s{t1}, s{sK1}, 514", f"s_add_u32 s{t0}, s{t0}, s{t1}",
      f"s_and_b32 s{t1}, s2, 3", f"s_lshl_b32 s{t1}, s{t1}, 7", f"s_add_u32 s{t0}, s{t0}, s{t1}", f"s_add_u32 s{t0}, s{t0}, 2",
      f"v_mul_u32_u24 v23, 32896, v21", f"v_lshl_add_u32 v23, v22, 4, v23", f"v_add_u32 v23, s{t0}, v23",
      f"s_lshl_b32 s{sM}, s{sW}, 10",
      "s_waitcnt lgkmcnt(0)")
    A.stamp("kernarg")
    A(f"s_cmp_ge_u32 s{sW}, 4", f"s_cselect_b32 s{sFP}, s{WI}, s{WR}", f"s_cselect_b32 s{sFP+1}, s{WI+1}, s{WR+1}",
      f"global_load_dwordx4 {q4(FIL)}, v23, s[{sFP}:{sFP+1}]")
    A(f"s_cmp_ge_u32 s{sP}, 116", f"s_cbranch_scc1 {n}_helper",
      f"s_cmp_ge_u32 s{sP}, 60", f"s_cbranch_scc1 {n}_role_c",
      f"v_and_b32 v23, 6, v21", f"v_xor_b32 v23, v23, v22", f"v_lshlrev_b32 v23, 4, v23",
      f"s_mov_b32 s{sSTR}, 128", f"s_mov_b32 s{sMI}, 16", f"v_mov_b32 v21, v{vL}" if False else "",
      f"s_cmp_ge_u32 s{sP}, 32", f"s_cbranch_scc1 {n}_role_b")
    A(f"s_mov_b32 s{sROLE}, 0",
      f"s_bfe_u32 s{t0}, s{sW}, 0x10001", f"s_lshl_b32 s{t0}, s{t0}, 2", f"s_bfe_u32 s{t1}, s{sP}, 0x20001", f"s_lshl_b32 s{t1}, s{t1}, 3", f"s_add_u32 s{t0}, s{t0}, s{t1}",
      f"s_bfe_u32 s{t1}, s{sP}, 0x10003", f"s_lshl_b32 s{t1}, s{t1}, 5", f"s_add_u32 s{t0}, s{t0}, s{t1}", f"s_lshl_b32 s{t0}, s{t0}, 15",
      f"s_and_b32 s{t1}, s{sW}, 1", f"s_lshl_b32 s{t1}, s{t1}, 1", f"s_lshr_b32 s{t2}, s{sW}, 2", f"s_lshl_b32 s{t2}, s{t2}, 2", f"s_add_u32 s{t1}, s{t1}, s{t2}",
      f"s_and_b32 s{t2}, s{sP}, 1", f"s_lshl_b32 s{t2}, s{t2}, 3", f"s_add_u32 s{t1}, s{t1}, s{t2}",
      f"s_lshr_b32 s{t2}, s{sP}, 4", f"s_lshl_b32 s{t2}, s{t2}, 4", f"s_add_u32 s{t1}, s{t1}, s{t2}", f"s_lshl_b32 s{t1}, s{t1}, 10",
      f"s_add_u32 s{t0}, s{t0}, s{t1}",
      f"v_bfe_u32 v{vDA}, v{vLane}, 3, 2", f"v_lshl_add_u32 v{vDA}, v{vDA}, 15, v23", f"v_lshrrev_b32 v22, 5, v{vLane}", f"v_lshl_add_u32 v{vDA}, v22, 10, v{vDA}")
    sadd64(A, sB, X, f"s{t0}")
    A(f"s_branch {n}_issue")
    A.label(f"{n}_role_b")
    A(f"s_mov_b32 s{sROLE}, 1", f"s_sub_u32 s{sT}, s{sP}, 32", f"s_lshl_b32 s{t0}, s{sT}, 3", f"s_add_u32 s{t0}, s{t0}, s{sW}", f"s_lshl_b32 s{t0}, s{t0}, 13",
      f"v_lshl_add_u32 v{vDA}, v21, 10, v23")
    sadd64(A, sB, W2, f"s{t0}")
    A(f"s_branch {n}_issue")
    A.label(f"{n}_role_c")
    A(f"s_mov_b32 s{sROLE}, 2", f"s_sub_u32 s{sT}, s{sP}, 60",
      f"s_and_b32 s{t0}, s{sW}, 1", f"s_lshl_b32 s{t0}, s{t0}, 2", f"v_and_b32 v23, 2, v21", f"v_or_b32 v23, s{t0}, v23", f"v_xor_b32 v23, v23, v22",
      f"v_lshlrev_b32 v23, 4, v23", f"v_mul_u32_u24 v{vDA}, 3584, v21", f"v_add_u32 v{vDA}, v{vDA}, v23",
      f"s_bitcmp1_b32 s{sT}, 0", f"s_cselect_b32 s{sB}, s{W3}, s{W1}", f"s_cselect_b32 s{sB+1}, s{W3+1}, s{W1+1}",
      f"s_lshr_b32 s{t0}, s{sT}, 1", f"s_lshl_b32 s{t0}, s{t0}, 7", f"s_mul_i32 s{t1}, s{sW}, {8*3584}", f"s_add_u32 s{t0}, s{t0}, s{t1}",
      f"s_mov_b32 s{sSTR}, {64*3584}", f"s_mov_b32 s{sMI}, 4")
    sadd64(A, sB, sB, f"s{t0}")
    A.label(f"{n}_issue")
    def dma(J):
        return [f"s_add_u32 m0, s{sM}, {J*8192}", f"global_load_lds_dwordx4 v{vDA}, s[{sB}:{sB+1}]",
                f"s_add_u32 s{sB}, s{sB}, s{sSTR}", f"s_addc_u32 s{sB+1}, s{sB+1}, 0"]
    vC, vK, vD, vA, vD25 = T, T+1, [T+2, T+3], [T+4, T+5], [T+6, T+7]
    setup = [
      f"v_lshrrev_b32 v{vC}, 2, v{vL}", f"v_lshlrev_b32 v{vC}, 3, v{vC}", f"v_and_b32 v{vK}, 3, v{vL}", f"v_add_u32 v{vC}, v{vC}, v{vK}",
      f"s_cmp_eq_u32 s{sROLE}, 2", f"s_cselect_b32 s{t0}, -1, 0", f"v_mov_b32 v{vK}, s{t0}", f"v_bfi_b32 v{vC}, v{vK}, v{vC}, v{vL}",
      f"s_lshl_b32 s{t0}, s{sHF}, 3", f"s_add_u32 s{t0}, s{t0}, s{sW}", f"s_lshl_b32 s{t0}, s{t0}, 5", f"v_add_u32 v{vC}, s{t0}, v{vC}",
      f"v_and_b32 v{T+8}, 1, v{vL}", f"v_cvt_f32_u32 v{T+9}, v{vQ}", f"v_mul_f32 v{T+9}, {fl(8.0)}, v{T+9}",
      f"v_cvt_f32_u32 v{T+10}, v{T+8}", f"v_mul_f32 v{T+10}, {fl(0.25)}, v{T+10}",
      f"v_mov_b32 v{T+11}, 0x80008000"]
    for mi in range(2):
        if mi: setup += [f"v_add_u32 v{vC}, s{sMI}, v{vC}"]
        setup += [f"v_lshrrev_b32 v{vK}, 1, v{vC}", f"v_add_u32 v{vK}, 1, v{vK}",
                  f"v_and_b32 v{T+12}, v{vK}, v{T+8}", f"v_bfe_u32 v{T+13}, v{vK}, 1, 1", f"v_xor_b32 v{T+12}, v{T+12}, v{T+13}",
                  f"v_mul_lo_u32 v{vM1[mi]}, v{T+12}, v{T+11}"]
        if mi == 0: setup += [f"v_and_b32 v{T+12}, 1, v{vK}", f"v_mul_lo_u32 v{vM2}, v{T+12}, v{T+11}"]
        setup += [f"v_xor_b32 v{vM3[mi]}, v{vM1[mi]}, v{vM2}",
                  f"v_cvt_f32_u32 v{vD[mi]}, v{vK}", f"v_mul_f32 v{vD[mi]}, {fl(1/512)}, v{vD[mi]}"]
        if mi == 1:
            setup += [f"v_cmp_ne_u32 vcc, 511, v{vC}", f"v_cndmask_b32 v{vD[mi]}, 0, v{vD[mi]}, vcc", f"v_cndmask_b32 v{T+14}, 0, v{T+10}, vcc"]
        setup += [f"v_fma_f32 v{vA[mi]}, v{vD[mi]}, v{T+9}, v{T+10 if mi == 0 else T+14}", f"v_mul_f32 v{vD25[mi]}, {fl(25.0)}, v{vD[mi]}"]
    setup += [f"v_mov_b32 v{vSc[0]}, {fl(1/16)}", f"v_mov_b32 v{T+12}, {fl(INV_SQRT512)}",
              f"v_cmp_le_u32 vcc, 510, v{vC}", f"v_cndmask_b32 v{vSc[1]}, v{vSc[0]}, v{T+12}, vcc"]
    setup = [x for x in setup if x]
    gen = []
    RAW = T + 16
    for j in range(4):
        for e in range(8):
            for mi in range(2):
                gen.append(f"v_cos_f32 v{RAW+8*mi+e}, v{vA[mi]}")
            for mi in range(2):
                if not (j == 3 and e == 7):
                    gen.append(f"v_add_f32 v{vA[mi]}, v{vA[mi]}, v{vD[mi] if e < 7 else vD25[mi]}")
            if e & 1:
                for mi in range(2):
                    gen.append(f"v_cvt_pk_bf16_f32 v{FB(mi,j)+(e>>1)}, v{RAW+8*mi+e-1}, v{RAW+8*mi+e}")
    body = setup + gen
    per = 10
    for J in range(8):
        A(*dma(J))
        A(*body[:per]); body = body[per:]
    A.stamp("issued")
    A(*body)
    A.stamp("fgen")
    def filter_addrs():
        L = [f"v_lshrrev_b32 v21, 3, v{vLane}", f"v_and_b32 v22, 7, v{vLane}",
             f"v_bfe_u32 v23, v{vLane}, 4, 1", f"v_lshlrev_b32 v23, 2, v23", f"v_xor_b32 v23, v23, v22", f"v_lshlrev_b32 v23, 4, v23",
             f"v_lshl_add_u32 v23, v21, 7, v23", f"s_add_u32 s{t0}, s{sM}, {FIL1}", f"v_add_u32 v{vFW}, s{t0}, v23",
             f"v_bfe_u32 v21, v{vLane}, 2, 2", f"v_and_b32 v22, 3, v{vLane}",
             f"s_lshr_b32 s{t0}, s{sW}, 2", f"s_lshl_b32 s{t0}, s{t0}, 5", f"s_and_b32 s{t1}, s{sW}, 3", f"s_lshl_b32 s{t1}, s{t1}, 2",
             f"s_add_u32 s{t0}, s{t0}, s{t1}", f"s_lshl_b32 s{t0}, s{t0}, 7", f"s_add_u32 s{t0}, s{t0}, {FIL1}",
             f"v_lshrrev_b32 v23, 1, v22", f"v_lshl_add_u32 v23, v{vQ}, 1, v23", f"v_lshrrev_b32 v{vFT}, 1, v21", f"v_lshlrev_b32 v{vFT}, 2, v{vFT}",
             f"v_xor_b32 v23, v23, v{vFT}", f"v_lshlrev_b32 v23, 4, v23", f"v_lshl_add_u32 v23, v21, 7, v23",
             f"v_and_b32 v22, 1, v22", f"v_lshl_add_u32 v23, v22, 3, v23", f"v_add_u32 v{vFT}, s{t0}, v23",
             f"s_and_b32 s{t0}, s{sW}, 3", f"s_lshl_b32 s{t0}, s{t0}, 1", f"s_lshr_b32 s{t1}, s{sW}, 2", f"s_add_u32 s{t0}, s{t0}, s{t1}",
             f"v_and_b32 v22, 7, v{vLane}", f"v_xor_b32 v22, s{t0}, v22", f"v_lshlrev_b32 v22, 4, v22", f"v_lshl_add_u32 v22, v{vLane}, 7, v22",
             f"v_add_u32 v{vFW2}, {FIL2}, v22",
             f"v_lshrrev_b32 v21, 3, v{vLane}", f"v_and_b32 v22, 7, v{vLane}", f"v_xor_b32 v22, v22, v21", f"v_lshlrev_b32 v22, 4, v22",
             f"v_lshl_add_u32 v22, v21, 13, v22",
             f"s_and_b32 s{t0}, s2, 3", f"s_lshl_b32 s{t0}, s{t0}, 3", f"s_add_u32 s{t0}, s{t0}, s{sW}", f"s_lshl_b32 s{t0}, s{t0}, 16",
             f"s_lshl_b32 s{t1}, s{sK1}, 7", f"s_add_u32 s{t0}, s{t0}, s{t1}", f"s_add_u32 s{t0}, s{t0}, {OFF['WF']}",
             f"v_add_u32 v{vFO}, s{t0}, v22"]
        return L
    A(*filter_addrs())
    fil_tr = [f"ds_read_b64_tr_b16 {p2(FIL)}, v{vFT}", f"ds_read_b64_tr_b16 {p2(FIL+2)}, v{vFT} offset:2048"]
    fil_w2 = [f"ds_write_b128 v{vFW2}, {q4(FIL)}"]
    fil_rd = lambda tmp: [f"v_lshlrev_b32 v{tmp}, 4, v{vLane}", f"s_add_u32 s{t0}, s{sM}, {FIL2}", f"v_add_u32 v{tmp}, s{t0}, v{tmp}", f"ds_read_b128 {q4(FIL)}, v{tmp}"]
    fil_st = [f"global_store_dwordx4 v{vFO}, {q4(FIL)}, s[{WS}:{WS+1}]{sc}"]
    A(f"s_cmp_eq_u32 s{sROLE}, 2", f"s_cbranch_scc1 {n}_pre_c")
    A(f"v_and_b32 v21, 6, v{vL}", f"v_xor_b32 v21, v21, v{vQ}", f"v_lshlrev_b32 v21, 4, v21", f"v_lshl_add_u32 v{vR[0]}, v{vL}, 7, v21",
      f"v_xor_b32 v{vR[1]}, 64, v{vR[0]}")
    def mainloop(role_c):
        def reads(s):
            b = s & 1; J = s >> 1
            if not role_c:
                return [f"ds_read_b128 {q4(IN(b,nt))}, v{vR[s&1]} offset:{J*8192 + nt*2048}" for nt in range(4)]
            return [f"ds_read_b64_tr_b16 {p2(IN(b,nt)+2*h)}, v{vR[nt]} offset:{J*8192 + (s&1)*4096 + h*512}" for nt in range(4) for h in range(2)]
        def fr(s, mi):
            return FB(mi, s & 3) if s < 4 else FD(s & 1, mi)
        def derive(s):
            r, j = s >> 2, s & 3
            L = []
            if r == 0: return L
            for mi in range(2):
                for e in range(4):
                    d, b = FD(s & 1, mi) + e, FB(mi, j) + e
                    if r == 2: L.append(f"v_xor_b32 v{d}, v{vM2}, v{b}")
                    else: L.append(f"v_xor_b32_dpp v{d}, v{b}, v{(vM1 if r == 1 else vM3)[mi]} quad_perm:[1,0,2,3] row_mask:0xf bank_mask:0xf")
            return L
        A("s_waitcnt vmcnt(8)", f"ds_write_b128 v{vFW}, {q4(FIL)}")
        A.stamp("filw")
        A("s_waitcnt vmcnt(7) lgkmcnt(0)")
        A.stamp("data0")
        A("s_barrier", *reads(0), *fil_tr)
        for s in range(16):
            if s in (1, 4, 8, 12): A.stamp(f"s{s}")
            mf = []
            for nt in range(4):
                for mi in range(2):
                    d = ACC(nt, mi); c = "0" if s == 0 else q4(d)
                    a, b = (q4(IN(s&1, nt)), q4(fr(s, mi))) if not role_c else (q4(fr(s, mi)), q4(IN(s&1, nt)))
                    mf.append(f"{MF} {q4(d)}, {a}, {b}, {c}")
            A("s_waitcnt lgkmcnt(0)")
            pre = []
            if s == 0: pre = fil_w2
            A(mf[0], *pre, mf[1])
            if s & 1 and s < 15:
                A(f"s_waitcnt vmcnt({7 - (s+1)//2})" + (" lgkmcnt(0)" if s == 1 else ""), "s_barrier")
            other = []
            if s < 15: other += reads(s+1)
            if s == 1: other += fil_rd(21)
            dv = derive(s+1) if s < 15 else []
            if s == 14: dv = dv + fil_st
            slots = [[] for _ in range(6)]
            for i, x in enumerate(other): slots[min(i * 6 // max(len(other), 1), 5)].append(x)
            for i, x in enumerate(dv): slots[min(i * 6 // max(len(dv), 1), 5)].append(x)
            for i, m in enumerate(mf[2:]): A(m, *slots[i])
    nst0 = A.nst
    mainloop(False)
    A.stamp("loopend")
    for nt in range(4):
        for mi in range(2):
            for e in range(4): A(f"v_mul_f32 v{ACC(nt,mi)+e}, v{vSc[mi]}, v{ACC(nt,mi)+e}")
    PK = lambda P, mi: 32 + 8*P + 4*mi
    for P in range(2):
        for mi in range(2):
            a0, a1, r = ACC(2*P, mi), ACC(2*P+1, mi), PK(P, mi)
            A(f"v_cvt_pk_bf16_f32 v{r}, v{a0}, v{a0+1}", f"v_cvt_pk_bf16_f32 v{r+1}, v{a0+2}, v{a0+3}",
              f"v_cvt_pk_bf16_f32 v{r+2}, v{a1}, v{a1+1}", f"v_cvt_pk_bf16_f32 v{r+3}, v{a1+2}, v{a1+3}")
    A(f"s_cmp_eq_u32 s{sROLE}, 1", f"s_cbranch_scc1 {n}_epi_b")
    A(f"s_lshl_b32 s{t0}, s{sW}, 12", f"s_add_u32 s{t0}, s{t0}, {TRS}",
      f"v_and_b32 v21, 7, v{vL}", f"v_xor_b32 v21, v21, v{vQ}", f"v_lshlrev_b32 v21, 4, v21", f"v_lshl_add_u32 v21, v{vL}, 7, v21",
      f"v_add_u32 v21, s{t0}, v21", f"v_xor_b32 v22, 64, v21")
    for P in range(2):
        for mi in range(2): A(f"ds_write_b128 v{22 if P else 21}, {q4(PK(P, mi))} offset:{mi*2048}")
    A(f"v_lshl_add_u32 v21, v{vLane}, 4, s{t0}",
      f"v_lshrrev_b32 v22, 3, v{vLane}", f"v_and_b32 v23, 7, v{vLane}", f"v_xor_b32 v23, v23, v22", f"v_lshlrev_b32 v23, 4, v23",
      f"v_lshl_add_u32 v23, v22, 12, v23",
      f"s_lshl_b32 s{t0}, s{sHF}, 3", f"s_add_u32 s{t0}, s{t0}, s{sW}", f"s_lshl_b32 s{t0}, s{t0}, 17", f"s_lshl_b32 s{t1}, s{sP}, 7",
      f"s_add_u32 s{t0}, s{t0}, s{t1}", f"s_add_u32 s{t0}, s{t0}, {OFF['ZA']}" if OFF['ZA'] else "")
    sadd64(A, sO, WS, f"s{t0}")
    A("s_waitcnt lgkmcnt(0)")
    for i in range(4): A(f"ds_read_b128 {q4(64+4*i)}, v21 offset:{i*1024}")
    for i in range(4):
        A(f"s_waitcnt lgkmcnt({3-i})", f"global_store_dwordx4 v23, {q4(64+4*i)}, s[{sO}:{sO+1}]{sc}")
        if i < 3: A(f"s_add_u32 s{sO}, s{sO}, 32768", f"s_addc_u32 s{sO+1}, s{sO+1}, 0")
    A(f"s_branch {n}_end")
    A.label(f"{n}_epi_b")
    A(f"s_lshl_b32 s{t0}, s{sHF}, 2", f"s_lshr_b32 s{t1}, s{sW}, 1", f"s_add_u32 s{t0}, s{t0}, s{t1}", f"s_lshl_b32 s{t0}, s{t0}, 13",
      f"s_and_b32 s{t1}, s{sW}, 1", f"s_lshl_b32 s{t1}, s{t1}, 2",
      f"v_bfe_u32 v21, v{vLane}, 2, 2", f"v_and_b32 v22, 3, v{vLane}",
      f"v_lshl_add_u32 v23, v{vQ}, 2, v21",
      f"v_and_b32 v21, 6, v23", f"v_lshlrev_b32 v23, 7, v23",
      f"v_lshrrev_b32 v{T}, 1, v22", f"v_or_b32 v{T}, s{t1}, v{T}", f"v_xor_b32 v{T}, v{T}, v21", f"v_lshl_add_u32 v23, v{T}, 4, v23",
      f"v_and_b32 v22, 1, v22", f"v_lshl_add_u32 v23, v22, 3, v23", f"v_add_u32 v23, s{t0}, v23", f"v_xor_b32 v22, 32, v23")
    WT = lambda i2, kc: 64 + 8*i2 + 4*kc
    for i2 in range(2):
        for kc in range(2):
            for h in range(2):
                A(f"ds_read_b64_tr_b16 {p2(WT(i2,kc)+2*h)}, v{22 if i2 else 23} offset:{kc*4096 + h*2048}")
    A(f"s_lshl_b32 s{t0}, s{sHF}, 4", f"s_lshl_b32 s{t1}, s{sW}, 1", f"s_add_u32 s{t0}, s{t0}, s{t1}", f"s_mul_i32 s{t0}, s{t0}, 56",
      f"s_lshl_b32 s{t1}, s{sT}, 1", f"s_add_u32 s{t0}, s{t0}, s{t1}", f"s_lshl_b32 s{t0}, s{t0}, 10",
      f"s_add_u32 s{t1}, s{t0}, {OFF['W2P']}", f"s_add_u32 s{t2}, s{t0}, {OFF['W2T']}",
      f"v_lshlrev_b32 v21, 4, v{vLane}", f"v_add_u32 v22, {56*1024}, v21")
    sadd64(A, sO, WS, f"s{t1}"); sadd64(A, sO2, WS, f"s{t2}")
    for mi in range(2):
        for P in range(2): A(f"global_store_dwordx4 v{22 if mi else 21}, {q4(PK(P, mi))}, s[{sO}:{sO+1}] offset:{P*1024}{sc}")
    A("s_waitcnt lgkmcnt(0)")
    for i2 in range(2):
        for kc in range(2): A(f"global_store_dwordx4 v{22 if i2 else 21}, {q4(WT(i2, kc))}, s[{sO2}:{sO2+1}] offset:{kc*1024}{sc}")
    A(f"s_branch {n}_end")
    A.label(f"{n}_pre_c")
    A(f"v_bfe_u32 v21, v{vLane}, 2, 2", f"v_and_b32 v22, 3, v{vLane}",
      f"v_lshl_add_u32 v23, v{vQ}, 3, v21", f"v_lshlrev_b32 v23, 7, v23",
      f"v_and_b32 v21, 2, v21", f"v_and_b32 v{T}, 1, v{vQ}", f"v_lshl_add_u32 v21, v{T}, 2, v21",
      f"v_lshrrev_b32 v{T}, 1, v22", f"v_xor_b32 v21, v21, v{T}", f"v_lshl_add_u32 v23, v21, 4, v23",
      f"v_and_b32 v22, 1, v22", f"v_lshl_add_u32 v{vR[0]}, v22, 3, v23")
    for nt in range(1, 4): A(f"v_xor_b32 v{vR[nt]}, {32*nt}, v{vR[0]}")
    nst1 = A.nst; A.nst = nst0
    mainloop(True)
    A.stamp("loopend_c")
    assert A.nst == nst1
    A(f"s_lshl_b32 s{t0}, s{sHF}, 3", f"s_add_u32 s{t0}, s{t0}, s{sW}", f"s_cmp_eq_u32 s{t0}, 15", f"s_cselect_b32 s{t1}, 3, 99",
      f"v_cmp_eq_u32 vcc, s{t1}, v{vQ}", f"v_mov_b32 v21, {fl(1/16)}", f"v_mov_b32 v22, {fl(INV_SQRT512)}",
      f"v_cndmask_b32 v22, v21, v22, vcc", f"v_cndmask_b32 v23, v21, 0, vcc" if False else f"v_mov_b32 v23, 0", f"v_cndmask_b32 v23, v21, v23, vcc")
    for nt in range(4):
        for mi in range(2):
            for e in range(4):
                r = 21 if not (mi == 1 and e >= 2) else (22 if e == 2 else 23)
                A(f"v_mul_f32 v{ACC(nt,mi)+e}, v{r}, v{ACC(nt,mi)+e}")
    A(f"s_lshr_b32 s{t1}, s{sT}, 2", f"s_lshl_b32 s{t1}, s{t1}, 18", f"s_lshl_b32 s{t0}, s{t0}, 14", f"s_add_u32 s{t0}, s{t0}, s{t1}",
      f"s_bfe_u32 s{t1}, s{sT}, 0x10001", f"s_lshl_b32 s{t1}, s{t1}, 13", f"s_add_u32 s{t0}, s{t0}, s{t1}",
      f"s_and_b32 s{t1}, s{sT}, 1", f"s_lshl_b32 s{t1}, s{t1}, 10", f"s_add_u32 s{t0}, s{t0}, s{t1}", f"s_add_u32 s{t0}, s{t0}, {OFF['W13']}",
      f"v_lshlrev_b32 v24, 4, v{vLane}", f"v_add_u32 v25, 4096, v24")
    sadd64(A, sO, WS, f"s{t0}")
    for nt in range(4):
        a0, a1, r = ACC(nt, 0), ACC(nt, 1), 32 + 4*nt
        A(f"v_cvt_pk_bf16_f32 v{r}, v{a0}, v{a0+1}", f"v_cvt_pk_bf16_f32 v{r+1}, v{a0+2}, v{a0+3}",
          f"v_cvt_pk_bf16_f32 v{r+2}, v{a1}, v{a1+1}", f"v_cvt_pk_bf16_f32 v{r+3}, v{a1+2}, v{a1+3}",
          f"global_store_dwordx4 v{25 if nt >> 1 else 24}, {q4(r)}, s[{sO}:{sO+1}] offset:{(nt&1)*2048}{sc}")
    A(f"s_branch {n}_end")
    A.label(f"{n}_helper")
    A(f"s_cmp_ge_u32 s2, 240", f"s_cbranch_scc0 {n}_fslice")
    RW = 32
    A(f"s_sub_u32 s{sT}, s2, 240",
      f"s_and_b32 s{t0}, s{sT}, 3", f"s_lshl_b32 s{t0}, s{t0}, 3", f"s_bfe_u32 s{t1}, s{sT}, 0x10002", f"s_lshl_b32 s{t1}, s{t1}, 5",
      f"s_add_u32 s{t0}, s{t0}, s{t1}", f"s_lshl_b32 s{t0}, s{t0}, 15",
      f"s_lshl_b32 s{t1}, s{sW}, 1", f"s_lshr_b32 s{t2}, s{sT}, 3", f"s_lshl_b32 s{t2}, s{t2}, 4", f"s_add_u32 s{t1}, s{t1}, s{t2}", f"s_lshl_b32 s{t1}, s{t1}, 10",
      f"s_add_u32 s{t0}, s{t0}, s{t1}", f"v_lshlrev_b32 v21, 4, v{vLane}")
    sadd64(A, sB, X, f"s{t0}")
    for i in range(8):
        A(f"global_load_dwordx4 {q4(RW+4*i)}, v21, s[{sB}:{sB+1}]", f"global_load_dwordx4 {q4(RW+32+4*i)}, v21, s[{sB}:{sB+1}] offset:1024")
        if i < 7: A(f"v_add_u32 v21, 32768, v21")
    A(*filter_addrs())
    A("s_waitcnt vmcnt(16)", f"ds_write_b128 v{vFW}, {q4(FIL)}", "s_waitcnt lgkmcnt(0)", "s_barrier", *fil_tr, "s_waitcnt lgkmcnt(0)", *fil_w2,
      "s_waitcnt lgkmcnt(0)", "s_barrier", *fil_rd(21), "s_waitcnt lgkmcnt(0)", *fil_st)
    U = 96
    SUM = 224
    for g in range(4):
        A(f"s_waitcnt vmcnt({(12 - 4*g) + 1})")
        rows = range(4*g, 4*g+4)
    A("s_waitcnt vmcnt(0)")
    for r in range(16):
        for e in range(4): A(f"v_lshlrev_b32 v{U+8*r+2*e}, 16, v{RW+4*r+e}", f"v_and_b32 v{U+8*r+2*e+1}, 0xffff0000, v{RW+4*r+e}")
    def allred():
        for sh in (8, 4, 2, 1):
            for r in range(16): A(f"v_add_f32_dpp v{SUM+r}, v{SUM+r}, v{SUM+r} row_ror:{sh} row_mask:0xf bank_mask:0xf")
        for r in range(16): A(f"v_mov_b32 v{32+r}, v{SUM+r}")
        for r in range(16): A(f"v_permlane16_swap_b32 v{SUM+r}, v{32+r}")
        for r in range(16): A(f"v_add_f32 v{SUM+r}, v{SUM+r}, v{32+r}")
        for r in range(16): A(f"v_mov_b32 v{32+r}, v{SUM+r}")
        for r in range(16): A(f"v_permlane32_swap_b32 v{SUM+r}, v{32+r}")
        for r in range(16): A(f"v_add_f32 v{SUM+r}, v{SUM+r}, v{32+r}")
    for r in range(16): A(f"v_add_f32 v{SUM+r}, v{U+8*r}, v{U+8*r+1}")
    for e in range(2, 8):
        for r in range(16): A(f"v_add_f32 v{SUM+r}, v{SUM+r}, v{U+8*r+e}")
    allred()
    for r in range(16): A(f"v_mul_f32 v{SUM+r}, {fl(-1/512)}, v{SUM+r}")
    for e in range(8):
        for r in range(16): A(f"v_add_f32 v{U+8*r+e}, v{U+8*r+e}, v{SUM+r}")
    for r in range(16): A(f"v_mul_f32 v{SUM+r}, v{U+8*r}, v{U+8*r}")
    for e in range(1, 8):
        for r in range(16): A(f"v_fmac_f32 v{SUM+r}, v{U+8*r+e}, v{U+8*r+e}")
    allred()
    A("v_mov_b32 v21, 0")
    for r in range(16): A(f"v_cmp_eq_u32 vcc, {r}, v{vLane}", f"v_cndmask_b32 v21, v21, v{SUM+r}, vcc")
    A(f"s_lshl_b32 s{t0}, s{sT}, 3", f"s_add_u32 s{t0}, s{t0}, s{sW}", f"s_lshl_b32 s{t0}, s{t0}, 6", f"s_add_u32 s{t0}, s{t0}, {OFF['SSQ']}",
      f"v_lshl_add_u32 v22, v{vLane}, 2, s{t0}", f"v_cmp_gt_u32 vcc, 16, v{vLane}", f"s_and_saveexec_b64 s[{sEX}:{sEX+1}], vcc",
      f"global_store_dword v22, v21, s[{WS}:{WS+1}]{sc}", f"s_branch {n}_end")
    A.label(f"{n}_fslice")
    A(*filter_addrs())
    A("s_waitcnt vmcnt(0)", f"ds_write_b128 v{vFW}, {q4(FIL)}", "s_waitcnt lgkmcnt(0)", "s_barrier", *fil_tr, "s_waitcnt lgkmcnt(0)", *fil_w2,
      "s_waitcnt lgkmcnt(0)", "s_barrier", *fil_rd(21), "s_waitcnt lgkmcnt(0)", *fil_st)
    A(f"s_and_b32 s{sT}, s2, 3",
      f"s_lshl_b32 s{t0}, s{sW}, 4", f"s_lshl_b32 s{t1}, s{sHF}, 8", f"s_add_u32 s{t0}, s{t0}, s{t1}",
      f"v_add_u32 v32, s{t0}, v{vL}",
      f"v_add_u32 v33, 128, v32",
      f"s_lshl_b32 s{t0}, s{sT}, 6", f"s_add_u32 s{t0}, s{t0}, 1", f"v_lshl_add_u32 v34, v{vQ}, 2, s{t0}",
      f"s_add_u32 s{t0}, s{sHF}, 14", f"s_lshl_b32 s{t0}, s{t0}, 18", f"s_lshl_b32 s{t1}, s{sT}, 16", f"s_add_u32 s{t0}, s{t0}, s{t1}",
      f"s_add_u32 s{t0}, s{t0}, s{sM}", f"s_add_u32 s{t0}, s{t0}, {OFF['W13']}", f"v_lshlrev_b32 v35, 4, v{vLane}")
    sadd64(A, sO, WS, f"s{t0}")
    A(f"v_mov_b32 v36, {fl(1/16)}", f"v_mov_b32 v37, {fl(-1/16)}", f"v_mov_b32 v38, {fl(INV_SQRT512)}")
    for it in range(8):
        d = 32 + (it & 1)
        A(f"v_add_u32 v40, {16*(it>>1)}, v34")
        for i in range(4):
            A(f"v_add_u32 v41, {i}, v40", f"v_mul_u32_u24 v41, v41, v{d}", f"v_and_b32 v41, 511, v41", f"v_cvt_f32_u32 v41, v41",
              f"v_mul_f32 v{44+i}, {fl(1/512)}, v41")
        for i in range(4): A(f"v_cos_f32 v{48+2*i}, v{44+i}", f"v_sin_f32 v{49+2*i}, v{44+i}")
        for i in range(4): A(f"v_mul_f32 v{48+2*i}, v36, v{48+2*i}", f"v_mul_f32 v{49+2*i}, v37, v{49+2*i}")
        if it >= 6:
            A(f"v_cmp_eq_u32 vcc, 253, v40", f"v_mul_f32 v41, {fl(16*INV_SQRT512)}, v54", f"v_cndmask_b32 v54, v54, v41, vcc", f"v_cndmask_b32 v55, v55, v38, vcc")
        r = 56 + 4*(it & 1)
        for i in range(4): A(f"v_cvt_pk_bf16_f32 v{r+i}, v{48+2*i}, v{49+2*i}")
        off = (it >> 1)*16384 + (it & 1)*8192
        A(f"v_add_u32 v42, {off}, v35", f"global_store_dwordx4 v42, {q4(r)}, s[{sO}:{sO+1}]{sc}")
    A.finish(n)
    return dict(name="k1_kernel", lines=[l for l in A.lines if l], vgpr=240, accum=240, sgpr=64, lds=TRS + 32768, grid=256, block=512)
```

```python
import sys
import os
from asmgen import Asm
Asm.PROF = bool(os.environ.get("PROF"))
from gen import *
from gen_fft import gen_fft
from gen_k1 import gen_k1b
ks = [gen_k1b() if not os.environ.get("OLDK1") else gen_k1(), gen_fft()]
L = ["k1_kernel", "fft_kernel"]
try:
    from gen_glu import gen_glu
    from gen_glu2 import gen_glu as gen_glu2
    ks += gen_glu2(); L.append("glu0_kernel")
    from gen_down import gen_down
    ks += gen_down(); L += ["down0_kernel", "fft_kernel", "glu1_kernel", "down1_kernel"]
except ImportError as e:
    print("partial:", e)
assemble(ks, L, sys.argv[1] if len(sys.argv) > 1 else "cur.s")
```

```python
from asmgen import *
from gen import *
import os

def gen_down1(mode):
    A = Asm(); n = f"down{mode}"
    sW, sPT, sCT, t0, t1, t2 = 3, 24, 25, 26, 27, 28
    sA = [30, 32, 34, 36]; sB = [38, 40, 42, 44]; sR, sO = 46, 48
    vLane, vQ, vL, vO0, vO1, vR = 2, 3, 4, 5, 6, 7
    vWk = [None, 8, 9, 10]; vRd = 11
    RES = 16
    ACC = 64; RD = 128
    q4 = lambda b: f"v[{b}:{b+3}]"
    p2 = lambda b: f"v[{b}:{b+1}]"
    prologue(A, n, 256)
    TS = 56*1024
    A(f"v_lshrrev_b32 v1, 6, v0", f"v_and_b32 v{vLane}, 63, v0", f"v_readfirstlane_b32 s{sW}, v1",
      f"v_bfe_u32 v{vQ}, v0, 4, 2", f"v_and_b32 v{vL}, 15, v0",
      f"s_and_b32 s{t0}, s2, 7", f"s_lshl_b32 s{t0}, s{t0}, 2", f"s_lshr_b32 s{t1}, s2, 6", f"s_add_u32 s{sPT}, s{t0}, s{t1}",
      f"s_bfe_u32 s{sCT}, s2, 0x30003",
      f"s_mul_i32 s{t0}, s{sW}, {14*1024}", f"s_add_u32 s{t0}, s{t0}, 4096", f"v_lshl_add_u32 v{vO0}, v{vLane}, 4, s{t0}",
      f"v_add_u32 v{vO1}, 8192, v{vO0}",
      f"s_mul_i32 s{t0}, s{sPT}, {4*TS}", f"s_add_u32 s{t0}, s{t0}, {OFF['H']}",
      f"s_mul_i32 s{t1}, s{sCT}, {4*TS}", f"s_add_u32 s{t1}, s{t1}, {OFF['W2P'] if mode == 0 else OFF['W2T']}")
    tA, tB = (t0, t1) if mode == 0 else (t1, t0)
    if mode == 0:
        A(f"s_lshl_b32 s{t2}, s{sCT}, 2", f"s_add_u32 s{t2}, s{t2}, s{sW}", f"s_lshl_b32 s{t2}, s{t2}, 16",
          f"s_lshl_b32 s{sR}, s{sPT}, 7", f"s_add_u32 s{t2}, s{t2}, s{sR}",
          f"v_lshlrev_b32 v{vR}, 12, v{vL}", f"v_lshl_add_u32 v{vR}, v{vQ}, 5, v{vR}", f"v_add_u32 v{vR}, s{t2}, v{vR}")
    else:
        A(f"s_lshl_b32 s{t2}, s{sPT}, 2", f"s_add_u32 s{t2}, s{t2}, s{sW}", f"s_lshl_b32 s{t2}, s{t2}, 14",
          f"s_lshl_b32 s{sR}, s{sCT}, 11", f"s_add_u32 s{t2}, s{t2}, s{sR}",
          f"v_lshl_add_u32 v{vR}, v{vLane}, 4, s{t2}")
    A("s_waitcnt lgkmcnt(0)")
    A.stamp("kernarg")
    sadd64(A, sA[0], WS, f"s{tA}")
    sadd64(A, sR, WS, OFF["ZB"] if mode == 0 else OFF["X3"])
    A(f"global_load_dwordx4 {q4(RES)}, v{vR}, s[{sR}:{sR+1}]", f"global_load_dwordx4 {q4(RES+4)}, v{vR}, s[{sR}:{sR+1}] offset:{16 if mode == 0 else 1024}")
    for i in range(1, 4): sadd64(A, sA[i], sA[i-1], TS)
    for k in range(4):
        A(f"s_xor_b32 s{t2}, s{sW}, {k}", f"s_mul_i32 s{t2}, s{t2}, {TS}", f"s_add_u32 s{t2}, s{t2}, s{tB}")
        sadd64(A, sB[k], WS, f"s{t2}")
    def loads(kc):
        sl = kc % 8; v = vO0 if kc < 8 else vO1; off = (kc % 8)*1024 - 4096
        L = []
        order = [("B", 0), ("A", 0), ("A", 1), ("A", 2), ("A", 3), ("B", 1), ("B", 2), ("B", 3)]
        for t, i in order:
            r = 32*sl + (4*i if t == "A" else 16 + 4*i); s = (sA if t == "A" else sB)[i]
            L.append(f"global_load_dwordx4 a[{r}:{r+3}], v{v}, s[{s}:{s+1}] offset:{off}")
        return L
    DD = int(os.environ.get("DOWND", "7")); BAR = os.environ.get("DOWNBAR", "")
    for kc in range(DD): A(*loads(kc))
    A.stamp("issued")
    for k in range(1, 4):
        A(f"s_xor_b32 s{t2}, s{sW}, {k}", f"s_mul_i32 s{t2}, s{t2}, 3", f"s_add_u32 s{t2}, s{t2}, {k-1}", f"s_lshl_b32 s{t2}, s{t2}, 12",
          f"v_lshl_add_u32 v{vWk[k]}, v{vLane}, 4, s{t2}")
    A(f"s_mul_i32 s{t2}, s{sW}, {3*4096}", f"v_lshl_add_u32 v{vRd}, v{vLane}, 4, s{t2}")
    if mode == 1:
        A(f"s_bfe_u32 s{t2}, s{sPT}, 0x30001", f"s_lshl_b32 s{t2}, s{t2}, 8",
          f"s_lshl_b32 s{t0}, s{sW}, 1", f"s_add_u32 s{t2}, s{t2}, s{t0}",
          f"s_and_b32 s{t0}, s{sPT}, 1", f"s_lshl_b32 s{t0}, s{t0}, 3", f"s_add_u32 s{t2}, s{t2}, s{t0}",
          f"s_lshr_b32 s{t0}, s{sPT}, 4", f"s_lshl_b32 s{t0}, s{t0}, 4", f"s_add_u32 s{t2}, s{t2}, s{t0}",
          f"s_lshl_b32 s{t2}, s{t2}, 10", f"s_lshl_b32 s{t0}, s{sCT}, 7", f"s_add_u32 s{t2}, s{t2}, s{t0}",
          f"v_and_b32 v12, 7, v{vL}", f"v_lshlrev_b32 v12, 15, v12", f"v_lshrrev_b32 v13, 3, v{vL}", f"v_lshl_add_u32 v12, v13, 10, v12",
          f"v_lshl_add_u32 v12, v{vQ}, 5, v12", f"v_add_u32 v12, s{t2}, v12")
    for kc in range(14):
        sl = kc % 8
        N = 8*(min(13, kc+DD-1) - kc)
        A(f"s_waitcnt vmcnt({N})")
        if BAR and kc < 13: A("s_barrier")
        if kc in (0, 1, 4, 7, 10, 13): A.stamp(f"kc{kc}")
        mf = []
        for k in range(4):
            for mi in range(4):
                d = ACC + (k*4 + mi)*4
                c = "0" if kc == 0 else q4(d)
                mf.append(f"{MF} {q4(d)}, a[{32*sl+4*mi}:{32*sl+4*mi+3}], a[{32*sl+16+4*k}:{32*sl+16+4*k+3}], {c}")
        ld = loads(kc+DD) if kc + DD <= 13 else []
        for i, m in enumerate(mf):
            A(m)
            if ld and i % 2 == 1: A(ld.pop(0))
    A.stamp("loopend")
    for k in range(1, 4):
        for mi in range(4):
            d = ACC + (k*4 + mi)*4
            A(f"ds_write_b128 v{vWk[k]}, {q4(d)} offset:{1024*mi}")
    U = 32
    for r in range(8): A(f"v_lshlrev_b32 v{U+2*r}, 16, v{RES+r}", f"v_and_b32 v{U+2*r+1}, 0xffff0000, v{RES+r}")
    A("s_waitcnt lgkmcnt(0)", "s_barrier")
    A.stamp("bar")
    for k in range(3):
        for mi in range(4):
            r = RD + (k*4 + mi)*4
            A(f"ds_read_b128 {q4(r)}, v{vRd} offset:{4096*k + 1024*mi}")
    for k in range(3):
        A(f"s_waitcnt lgkmcnt({8 - 4*k})")
        for mi in range(4):
            d = ACC + 4*mi; r = RD + (k*4 + mi)*4
            for e in range(4): A(f"v_add_f32 v{d+e}, v{d+e}, v{r+e}")
    if mode == 1:
        for i in range(16): A(f"v_add_f32 v{ACC+i}, v{ACC+i}, v{U+i}")
    Rg = lambda m, jj: ACC + 4*m + jj
    for jj in range(4): A(f"v_permlane32_swap_b32 v{Rg(0,jj)}, v{Rg(2,jj)}", f"v_permlane32_swap_b32 v{Rg(1,jj)}, v{Rg(3,jj)}")
    for jj in range(4): A(f"v_permlane16_swap_b32 v{Rg(0,jj)}, v{Rg(1,jj)}", f"v_permlane16_swap_b32 v{Rg(2,jj)}, v{Rg(3,jj)}")
    if mode == 0:
        for i in range(16): A(f"v_add_f32 v{ACC+i}, v{ACC+i}, v{U+i}")
    O = 48
    for r in range(8): A(f"v_cvt_pk_bf16_f32 v{O+r}, v{ACC+2*r}, v{ACC+2*r+1}")
    if mode == 0:
        sadd64(A, sO, WS, OFF["ZA"])
        A(f"global_store_dwordx4 v{vR}, {q4(O)}, s[{sO}:{sO+1}]{SC1}", f"global_store_dwordx4 v{vR}, {q4(O+4)}, s[{sO}:{sO+1}] offset:16{SC1}")
        SQ = 96
        for i in range(16): A(f"v_mul_f32 v{SQ+i}, v{ACC+i}, v{ACC+i}")
        A(f"s_lshl_b32 s{t0}, s{sCT}, 2", f"s_add_u32 s{t0}, s{t0}, s{sW}", f"s_cmp_eq_u32 s{t0}, 31", f"s_cbranch_scc0 {n}_nomask",
          f"v_cmp_eq_u32 vcc, 15, v{vL}")
        for i in range(16): A(f"v_cndmask_b32 v{SQ+i}, v{SQ+i}, 0, vcc" if False else f"v_cndmask_b32_e64 v{SQ+i}, v{SQ+i}, 0, vcc")
        A.label(f"{n}_nomask")
        D = lambda dst, src, ctrl, bm: f"v_add_f32_dpp v{dst}, v{src}, v{src} {ctrl} row_mask:0xf bank_mask:{bm}"
        for i in range(8): A(D(SQ+i, SQ+i, "row_mirror", "0x3"))
        for i in range(8): A(D(SQ+i, SQ+8+i, "row_mirror", "0xc"))
        for i in range(4): A(D(SQ+i, SQ+i, "row_half_mirror", "0x5"))
        for i in range(4): A(D(SQ+i, SQ+4+i, "row_half_mirror", "0xa"))
        for i in range(4): A(D(SQ+i, SQ+i, "quad_perm:[2,3,0,1]", "0xf"))
        for i in range(4): A(D(SQ+i, SQ+i, "quad_perm:[1,0,3,2]", "0xf"))
        A(f"v_and_b32 v12, 1, v0", f"v_cmp_eq_u32 vcc, 1, v12", f"v_cndmask_b32 v{SQ}, v{SQ}, v{SQ+1}, vcc", f"v_cndmask_b32 v{SQ+2}, v{SQ+2}, v{SQ+3}, vcc",
          f"v_and_b32 v12, 2, v0", f"v_cmp_eq_u32 vcc, 2, v12", f"v_cndmask_b32 v{SQ}, v{SQ}, v{SQ+2}, vcc",
          f"v_lshlrev_b32 v12, 2, v0", f"ds_write_b32 v12, v{SQ} offset:49152", "s_waitcnt lgkmcnt(0)", "s_barrier",
          f"s_cmp_eq_u32 s{sW}, 0", f"s_cbranch_scc0 {n}_end")
        for k in range(4): A(f"ds_read_b32 v{SQ+4+k}, v12 offset:{49152 + 256*k}")
        A(f"s_lshl_b32 s{t0}, s{sPT}, 8", f"s_add_u32 s{t0}, s{t0}, {OFF['SSQ']}", f"v_add_u32 v12, s{t0}, v12", "s_waitcnt lgkmcnt(0)",
          f"v_add_f32 v{SQ+4}, v{SQ+4}, v{SQ+5}", f"v_add_f32 v{SQ+6}, v{SQ+6}, v{SQ+7}", f"v_add_f32 v{SQ+4}, v{SQ+4}, v{SQ+6}",
          f"global_atomic_add_f32 v12, v{SQ+4}, s[{WS}:{WS+1}]")
    else:
        A(f"global_store_dwordx4 v12, {q4(O)}, s[{OUT}:{OUT+1}]{SC1}", f"global_store_dwordx4 v12, {q4(O+4)}, s[{OUT}:{OUT+1}] offset:16{SC1}")
    A.finish(n)
    return dict(name=f"down{mode}_kernel", lines=A.lines, vgpr=176 + 256, accum=176, sgpr=64, lds=49152 + 1024, grid=256, block=256)

def gen_down():
    return [gen_down1(0), gen_down1(1)]
```

```python
from asmgen import *
from gen import *
import os

def hoist_m0(flat):
    out = list(flat)
    i = 0
    while i < len(out):
        if out[i].startswith("s_add_u32 m0"):
            j = i
            while j > 0 and not out[j-1].startswith("global_load_lds") and "m0" not in out[j-1]:
                out[j-1], out[j] = out[j], out[j-1]; j -= 1
                if out[j+1].startswith("v_mfma"): break
        i += 1
    return out

def gen_glu(R=4, DELTA=None):
    if DELTA is None: DELTA = int(os.environ.get("DELTA", "4"))
    X = os.environ.get("GLUX", "")
    A = Asm(); n = "glu"
    sW, sPH, sWFv, sRT, sJ = 3, 24, 25, 26, 27
    sZ, sWA, sWB, sMZ, sMA, sMT, t0, t1, t2 = 28, 30, 32, 34, 35, 36, 37, 38, 39
    sHk = [40, 41, 42, 43]; sEX = 44; sPF = 46; sM1, sM2, sM3 = 48, 50, 52; sWT = 54; sLAY = 60
    vLane, vQ, vL, vZo, vWo, vA = 2, 3, 4, 5, 6, 7
    vB = [8, 9, 10, 11]
    vStW, vMask, vAT, vPF, vPD = 12, 13, 16, 17, 18
    ST = 24
    AFR = [32, 48]; ACC = 64; GR = 128; OP = 132; TM = 148
    NB = DELTA + 2
    BFR = lambda u: 160 + 16 * (u % NB)
    assert 160 + 16*NB <= 256
    ZS = lambda s: (s % R) * 8192
    WBASE = R * 8192
    WSL = lambda s: (s % R) * 16384
    XA = WBASE + R * 16384
    STAT = XA + DELTA * 8192
    q4 = lambda b: f"v[{b}:{b+3}]"
    p2 = lambda b: f"v[{b}:{b+1}]"
    A(f"s_mov_b32 s{sLAY}, 0")
    A.label("glu_body")
    prologue(A, n, 256)
    A(f"v_lshrrev_b32 v1, 6, v0", f"v_and_b32 v{vLane}, 63, v0", f"v_readfirstlane_b32 s{sW}, v1",
      f"v_bfe_u32 v{vQ}, v0, 4, 2", f"v_and_b32 v{vL}, 15, v0",
      f"s_and_b32 s{t0}, s2, 1", f"s_lshl_b32 s{t0}, s{t0}, 3", f"s_bfe_u32 s{t1}, s2, 0x30003", f"s_add_u32 s{sRT}, s{t0}, s{t1}",
      f"s_bfe_u32 s{t0}, s2, 0x20001", f"s_lshl_b32 s{t0}, s{t0}, 2", f"s_lshr_b32 s{t1}, s2, 6", f"s_add_u32 s{sJ}, s{t0}, s{t1}",
      f"s_lshr_b32 s{sPH}, s{sW}, 2", f"s_and_b32 s{sWFv}, s{sW}, 3",
      f"s_bfe_u32 s{t0}, s{sW}, 0x10001", f"s_lshl_b32 s{t0}, s{t0}, 2",
      f"v_or_b32 v14, s{t0}, v{vQ}", f"v_lshlrev_b32 v14, 1, v14", f"v_xor_b32 v14, v14, v{vL}", f"v_lshlrev_b32 v14, 4, v14",
      f"s_lshl_b32 s{t0}, s{sW}, 2", f"v_add_u32 v15, s{t0}, v{vQ}", f"v_lshl_add_u32 v{vZo}, v15, 12, v14",
      f"v_lshlrev_b32 v{vWo}, 4, v{vLane}",
      f"s_lshl_b32 s{sMZ}, s{sW}, 10",
      f"s_lshr_b32 s{t0}, s{sW}, 1", f"s_lshl_b32 s{t0}, s{t0}, 2", f"s_and_b32 s{t1}, s{sW}, 1", f"s_add_u32 s{t2}, s{t0}, s{t1}", f"s_lshl_b32 s{t2}, s{t2}, 10",
      f"s_add_u32 s{sMA}, s{t2}, {WBASE}", f"s_add_u32 s{sMT}, s{sMZ}, {XA}",
      f"s_lshl_b32 s{t0}, s{sRT}, 8", f"s_add_u32 s{t0}, s{t0}, {OFF['ZB']}",
      f"s_lshl_b32 s{t1}, s{sJ}, 18", f"s_add_u32 s{t1}, s{t1}, {OFF['W13']}", f"s_add_u32 s{t1}, s{t1}, s{t2}",
      f"s_lshr_b32 s{sPF}, s2, 3", f"s_lshl_b32 s{sPF}, s{sPF}, 3", f"s_add_u32 s{sPF}, s{sPF}, s{sW}", f"s_lshl_b32 s{sPF}, s{sPF}, 13",
      f"s_lshl_b32 s{t2}, s{sLAY}, 21", f"s_add_u32 s{sPF}, s{sPF}, s{t2}", f"s_add_u32 s{sPF}, s{sPF}, {OFF['W2P'] + 4096}",
      f"v_lshrrev_b32 v{vPF}, 2, v{vLane}", f"v_lshl_add_u32 v{vPF}, v{vPF}, 7, s{sPF}",
      f"s_lshr_b32 s{t2}, s{sJ}, 1", f"s_cmp_eq_u32 s{t2}, 7", f"s_cselect_b32 s{t2}, 1, 0", f"s_cmp_gt_u32 s{t2}, s{sLAY}",
      "s_waitcnt lgkmcnt(0)", f"s_cbranch_scc1 {n}_skip")
    A.stamp("kernarg")
    sadd64(A, sZ, WS, f"s{t0}"); sadd64(A, sWA, WS, f"s{t1}"); sadd64(A, sWB, sWA, 2048); sadd64(A, sWT, sWA, 2048 + (16 - DELTA)*16384)
    def piece(kind, idx):
        if kind == "Z":
            return [f"s_add_u32 m0, s{sMZ}, {ZS(idx)}", f"global_load_lds_dwordx4 v{vZo}, s[{sZ}:{sZ+1}]",
                    f"s_add_u32 s{sZ}, s{sZ}, 131072", f"s_addc_u32 s{sZ+1}, s{sZ+1}, 0"]
        if kind == "A":
            return [f"s_add_u32 m0, s{sMA}, {WSL(idx)}", f"global_load_lds_dwordx4 v{vWo}, s[{sWA}:{sWA+1}]",
                    f"s_add_u32 s{sWA}, s{sWA}, 16384", f"s_addc_u32 s{sWA+1}, s{sWA+1}, 0"]
        if kind == "B":
            return [f"s_add_u32 m0, s{sMA}, {WSL(idx) + 2048}", f"global_load_lds_dwordx4 v{vWo}, s[{sWB}:{sWB+1}]",
                    f"s_add_u32 s{sWB}, s{sWB}, 16384", f"s_addc_u32 s{sWB+1}, s{sWB+1}, 0"]
        if kind == "T":
            return [f"s_add_u32 m0, s{sMT}, {idx*8192}", f"global_load_lds_dwordx4 v{vWo}, s[{sWT}:{sWT+1}]",
                    f"s_add_u32 s{sWT}, s{sWT}, 16384", f"s_addc_u32 s{sWT+1}, s{sWT+1}, 0"]
        if kind == "P":
            return [f"global_load_dword v{vPD}, v{vPF}, s[{WS}:{WS+1}] offset:{-4096 + 2048*idx}"]
    order = []
    for u in range(16):
        order += [("Z", u), ("A", u)] + ([("B", u)] if u >= DELTA else [])
    P0 = int(os.environ.get("P0", "6"))
    caps = [3]*DELTA + [4]*(16 - DELTA)
    if os.environ.get("CAPS"): caps = [int(c) for c in os.environ["CAPS"]]
    PS = [int(c, 16) for c in os.environ.get("PS", "ddee")]; TS0 = int(os.environ.get("TS0", "8"))
    extras = {}
    for i in range(DELTA): extras.setdefault(TS0 + i, []).append(("T", i))
    for i in range(4): extras.setdefault(PS[i], []).append(("P", i))
    if "p" in X:
        for k in list(extras): extras[k] = [e for e in extras[k] if e[0] != "P"]
    sched = []; pos = P0
    for u in range(16):
        ex = extras.get(u, [])
        L = []
        while pos < len(order) and len(L) + len(ex) < max(caps[u], 3 + len(ex) if u >= DELTA else 0) and order[pos][1] <= u + R:
            L.append(order[pos]); pos += 1
        sched.append(L + ex)
    assert pos == len(order)
    issued = list(order[:P0])
    def outstanding_after(pred):
        last = max(i for i, p in enumerate(issued) if pred(p))
        return len(issued) - 1 - last
    for p in order[:P0]: A(*piece(*p))
    A.stamp("dmaissued")
    A(f"s_lshl_b32 s{t0}, s{sWFv}, 12", f"s_add_u32 s{t0}, s{t0}, {WBASE}", f"v_add_u32 v{vA}, s{t0}, v{vWo}",
      f"s_lshl_b32 s{t0}, s{sWFv}, 11", f"s_add_u32 s{t0}, s{t0}, {XA}", f"v_add_u32 v{vAT}, s{t0}, v{vWo}",
      f"v_bfe_u32 v14, v0, 2, 2", f"v_lshl_add_u32 v15, v{vQ}, 3, v14", f"v_lshlrev_b32 v15, 8, v15",
      f"v_and_b32 v19, 1, v{vQ}", f"v_lshl_add_u32 v14, v19, 2, v14",
      f"s_lshl_b32 s{t0}, s{sPH}, 2", f"s_add_u32 s{t0}, s{t0}, s{sWFv}", f"v_xor_b32 v14, s{t0}, v14",
      f"v_lshl_add_u32 v15, v14, 5, v15", f"v_and_b32 v14, 3, v0", f"v_lshl_add_u32 v{vB[0]}, v14, 3, v15")
    for k in range(1, 4): A(f"v_xor_b32 v{vB[k]}, {32*k}, v{vB[0]}")
    A(f"v_and_b32 v14, 3, v{vL}", f"v_cmp_eq_u32 s[{sM1}:{sM1+1}], 1, v14", f"v_cmp_eq_u32 s[{sM2}:{sM2+1}], 2, v14", f"v_cmp_eq_u32 s[{sM3}:{sM3+1}], 3, v14",
      f"s_lshl_b32 s{t0}, s{sW}, 6", f"s_add_u32 s{t0}, s{t0}, {STAT}", f"v_lshl_add_u32 v15, v{vL}, 2, s{t0}",
      f"v_lshlrev_b32 v19, 2, v{vLane}", f"v_add_u32 v19, {STAT + 512}, v19", f"v_lshrrev_b32 v14, 2, v{vL}", f"v_cmp_eq_u32 vcc, v14, v{vQ}",
      f"v_cndmask_b32 v{vStW}, v19, v15, vcc", f"v_mov_b32 v19, v15",
      f"s_cmp_ge_u32 s{sJ}, 14", f"s_cselect_b32 s{t0}, -1, 0xffff", f"v_mov_b32 v14, s{t0}", f"v_cmp_eq_u32 vcc, 3, v{vQ}", f"v_cndmask_b32 v{vMask}, -1, v14, vcc")
    vStR = 19
    def readsZ(u):
        b = BFR(u)
        return [f"ds_read_b64_tr_b16 {p2(b+4*k+2*h)}, v{vB[k]} offset:{ZS(u) + 1024*h}" for k in range(4) for h in range(2)]
    def reads(u):
        a = AFR[u & 1]
        z = readsZ(u)
        w = [f"ds_read_b128 {q4(a+4*t)}, v{vA} offset:{WSL(u) + 1024*t}" for t in range(4) if t < 2 or u >= DELTA]
        return z[:2] + w + z[2:]
    def treads(i):
        a = AFR[(16 + i) & 1]
        return [f"ds_read_b128 {q4(a+4*t)}, v{vAT} offset:{i*8192 + 1024*(t-2)}" for t in (2, 3)]
    acc = lambda t, k: ACC + (t*4 + k)*4
    first = set()
    def mfma(t, k, a, b):
        d = acc(t, k); c = q4(d) if (t, k) in first else "0"; first.add((t, k))
        return f"{MF} {q4(d)}, {q4(a+4*t)}, {q4(b+4*k)}, {c}"
    def haddr():
        L = [f"s_lshl_b32 s{t0}, s{sRT}, 3", f"s_lshl_b32 s{t1}, s{sPH}, 2", f"s_add_u32 s{t0}, s{t0}, s{t1}", f"s_add_u32 s{t0}, s{t0}, s{sWFv}",
             f"s_lshl_b32 s{t1}, s{sJ}, 2", f"s_add_u32 s{t1}, s{t1}, s{sWFv}", f"s_lshl_b32 s{t1}, s{t1}, 10", f"s_add_u32 s{t1}, s{t1}, {OFF['H']}"]
        for k in range(4):
            L += [f"s_xor_b32 s{sHk[k]}, s{t0}, {k}", f"s_mul_i32 s{sHk[k]}, s{sHk[k]}, {56*1024}", f"s_add_u32 s{sHk[k]}, s{sHk[k]}, s{t1}"]
        return L
    A(*haddr())
    A.stamp("prewait")
    A(f"s_waitcnt vmcnt({outstanding_after(lambda p: p[1] == 0 and p[0] in 'ZAB')})")
    A.stamp("data0")
    A("s_barrier", *reads(0))
    for u in range(16):
        a, b = AFR[u & 1], BFR(u)
        if u in (1, 4, 8, 12): A.stamp(f"step{u}")
        mf = [f"{MF} {q4(GR)}, {q4(b)}, {q4(b)}, {'0' if u == 0 else q4(GR)}"] if "s" not in X else []
        for k in range(4):
            mf += [mfma(t, k, a, b) for t in (0, 1)]
            if u >= DELTA: mf += [mfma(t, k, a, BFR(u - DELTA)) for t in (2, 3)]
        A("s_waitcnt lgkmcnt(0)")
        if u < 15:
            A(*mf[:3])
            need = lambda p: p[1] == u + 1 and p[0] in "ZAB"
            A(f"s_waitcnt vmcnt({outstanding_after(need)})", "s_barrier")
            rd = reads(u + 1); dd = list(sched[u]); issued += dd
            rest = mf[3:]
            ns = len(rest)
            slots = [[] for _ in rest]
            for i, x in enumerate(rd): slots[min(i * ns // len(rd), ns - 1)].append(x)
            for i, p in enumerate(dd): slots[min((2*i + 1) * ns // (2*len(dd)), ns - 1)] += piece(*p)
            flat = []
            for m, sl in zip(rest, slots): flat += [m] + sl
            A(*hoist_m0(flat))
        else:
            assert not sched[u]
            A(f"v_and_b32 v{b+3}, v{vMask}, v{b+3}")
            A(*mf[:6])
            A(f"v_cndmask_b32_e64 v14, v{GR}, v{GR+1}, s[{sM1}:{sM1+1}]", f"v_cndmask_b32_e64 v14, v14, v{GR+2}, s[{sM2}:{sM2+1}]",
              f"v_cndmask_b32_e64 v14, v14, v{GR+3}, s[{sM3}:{sM3+1}]", f"ds_write_b32 v{vStW}, v14", mf[6])
            N = outstanding_after(lambda p: p[0] == "T") if DELTA else 63
            A(f"s_waitcnt vmcnt({N}) lgkmcnt(0)", "s_barrier")
            rd = []
            for k in range(4): rd += [f"v_xor_b32 v14, {64*k}, v{vStR}" if k else "", f"ds_read_b32 v{ST+2*k}, v{14 if k else vStR}"]
            rd = [x for x in rd if x]
            A(*rd)
            if DELTA: A(*treads(0))
            rest = mf[7:]
            st = [[f"v_fma_f32 v{ST+2*k}, v{ST+2*k}, v20, v21" for k in range(4)],
                  [f"v_rsq_f32 v{ST+2*k+1}, v{ST+2*k}" for k in range(4)],
                  [f"v_mul_f32 v{ST+2*k+1}, {fl(-1.4426950408889634)}, v{ST+2*k+1}" for k in range(4)]]
            A(f"v_mov_b32 v20, {fl(1/512)}", f"v_mov_b32 v21, {fl(1e-5)}")
            nr = len(rest)
            A(*rest[:nr-4], f"s_waitcnt lgkmcnt({2 if DELTA else 0})", *st[0], rest[nr-4], *st[1], rest[nr-3], rest[nr-2], *st[2], rest[nr-1])
    A.stamp("loopend")
    def epi(i, ks, T):
        prs = [(k, p) for k in ks for p in range(2)]
        m = len(prs)
        g = lambda k, p: acc(2*i, k) + 2*p
        uu = lambda k, p: acc(2*i+1, k) + 2*p
        L = []
        for x, (k, p) in enumerate(prs): L.append(f"v_pk_mul_f32 {p2(T+2*x)}, {p2(g(k,p))}, {p2(ST+2*k)} op_sel:[0,1] op_sel_hi:[1,1]")
        for x in range(m): L += [f"v_exp_f32 v{T+2*x}, v{T+2*x}", f"v_exp_f32 v{T+2*x+1}, v{T+2*x+1}"]
        for x, (k, p) in enumerate(prs): L.append(f"v_pk_mul_f32 {p2(T+2*m+2*x)}, {p2(g(k,p))}, {p2(uu(k,p))}")
        for x, (k, p) in enumerate(prs): L.append(f"v_pk_fma_f32 {p2(T+2*x)}, {p2(T+2*x)}, {p2(ST+2*k)}, {p2(ST+2*k)} op_sel_hi:[1,0,0]")
        for x in range(m): L += [f"v_rcp_f32 v{T+2*x}, v{T+2*x}", f"v_rcp_f32 v{T+2*x+1}, v{T+2*x+1}"]
        for x in range(m): L.append(f"v_pk_mul_f32 {p2(T+2*m+2*x)}, {p2(T+2*m+2*x)}, {p2(T+2*x)}")
        for x, (k, p) in enumerate(prs): L.append(f"v_cvt_pk_bf16_f32 v{OP+4*k+2*i+p}, v{T+2*m+2*x}, v{T+2*m+2*x+1}")
        return L
    def tail(fill):
        mm = []
        for i in range(DELTA):
            a = AFR[(16 + i) & 1]; b = BFR(16 - DELTA + i)
            grp = [mfma(t, k, a, b) for k in range(4) for t in (2, 3)]
            mm.append(grp)
        tot = 8 * DELTA; f = list(fill); done = 0; nf = len(f)
        for i in range(DELTA):
            A("s_waitcnt lgkmcnt(0)")
            if i + 1 < DELTA: A(*treads(i + 1))
            for x, m in enumerate(mm[i]):
                A(m); done += 1
                while f and (nf - len(f)) < nf * done / tot: A(f.pop(0))
        A(*f)
    hstore = lambda k: [f"v_add_u32 v14, s{sHk[k]}, v{vWo}", f"global_store_dwordx4 v14, {q4(OP+4*k)}, s[{WS}:{WS+1}]{SC1}"]
    A(f"s_cmp_ge_u32 s{sJ}, 14", f"s_cbranch_scc1 {n}_x3")
    if DELTA:
        TA_ = [32 - 0, 48]
        fill = epi(0, [0], 32) + epi(0, [1], 48) + epi(0, [2], 32) + epi(0, [3], 48) if "e" in X else None
        if fill is None:
            a0, a1, a2, a3 = epi(0, [0], 32), epi(0, [1], 48), epi(0, [2], 32), epi(0, [3], 48)
            def zip2(x, y):
                o = []
                for p, q in zip(x, y): o += [p, q]
                return o
            fill = zip2(a0, a1) + zip2(a2, a3)
        tail(fill)
        A.stamp("tailend")
        for ks in ([0, 1], [2, 3]):
            A(*epi(1, ks, 160 + 16*(ks[0] >> 1)))
            for k in ks: A(*hstore(k))
    else:
        A.stamp("tailend")
        for k in range(4):
            T = 192 + 16*(k & 1)
            e0, e1 = epi(0, [k], T), epi(1, [k], T + 8)
            o = []
            for p, q in zip(e0, e1): o += [p, q]
            A(*o, *hstore(k))
    A(f"s_branch {n}_fin")
    A.label(f"{n}_x3")
    A(f"s_lshl_b32 s{t0}, s{sRT}, 3", f"s_lshl_b32 s{t1}, s{sPH}, 2", f"s_add_u32 s{t0}, s{t0}, s{t1}", f"s_add_u32 s{t0}, s{t0}, s{sWFv}",
      f"s_sub_u32 s{t1}, s{sJ}, 14", f"s_lshl_b32 s{t1}, s{t1}, 3", f"s_lshl_b32 s{t2}, s{sWFv}, 1", f"s_add_u32 s{t1}, s{t1}, s{t2}", f"s_lshl_b32 s{t1}, s{t1}, 10",
      f"s_add_u32 s{t1}, s{t1}, {OFF['X3']}")
    for k in range(4):
        A(f"s_xor_b32 s{sHk[k]}, s{t0}, {k}", f"s_lshl_b32 s{sHk[k]}, s{sHk[k]}, 14", f"s_add_u32 s{sHk[k]}, s{sHk[k]}, s{t1}")
    def x3(k, p):
        O = OP + 4*((2*k + p) & 3)
        d0, d1 = acc(2*p, k), acc(2*p+1, k)
        return [f"v_cvt_pk_bf16_f32 v{O}, v{d0}, v{d0+1}", f"v_cvt_pk_bf16_f32 v{O+1}, v{d0+2}, v{d0+3}",
                f"v_cvt_pk_bf16_f32 v{O+2}, v{d1}, v{d1+1}", f"v_cvt_pk_bf16_f32 v{O+3}, v{d1+2}, v{d1+3}",
                f"v_add_u32 v14, s{sHk[k]}, v{vWo}", f"global_store_dwordx4 v14, {q4(O)}, s[{WS}:{WS+1}] offset:{1024*p}{SC1}"]
    if DELTA:
        tail([x for k in range(4) for x in x3(k, 0)])
        for k in range(4): A(*x3(k, 1))
    else:
        for k in range(4):
            for p in range(2): A(*x3(k, p))
    A(f"s_branch {n}_fin")
    A.label(f"{n}_skip")
    for i in range(4): A(*piece("P", i))
    A.label(f"{n}_fin")
    A(f"s_lshl_b32 s{t0}, s2, 5", f"s_add_u32 s{t0}, s{t0}, {OFF['SSQ']}", f"v_lshl_add_u32 v14, v0, 2, s{t0}", "v_mov_b32 v15, 0",
      "v_cmp_gt_u32 vcc, 8, v0", f"s_and_saveexec_b64 s[{sEX}:{sEX+1}], vcc", f"s_cbranch_execz {n}_end",
      f"global_store_dword v14, v15, s[{WS}:{WS+1}]{SC1}")
    A.finish(n)
    lds = STAT + 512 + 256
    k0 = dict(name="glu0_kernel", lines=A.lines, vgpr=256, accum=256, sgpr=64, lds=lds, grid=256, block=512)
    k1 = dict(name="glu1_kernel", lines=[f"s_mov_b32 s{sLAY}, 1", "s_branch glu_body"], vgpr=256, accum=256, sgpr=64, lds=lds, grid=256, block=512)
    return [k0, k1]
```

```python
import re

class Asm:
    def __init__(self):
        self.lines = []
    def __call__(self, *txt):
        for t in txt:
            for l in t.split("\n"):
                l = l.strip()
                if l:
                    self.lines.append(l)
    def label(self, name):
        self.lines.append(name + ":")
    PROF = False
    nst = 0
    def stamp(self, tag=""):
        if not Asm.PROF or Asm.PROF == "light": return
        i = self.nst; self.nst += 1
        assert i < 14
        self.lines.append(f"s_memtime s[{66+2*i}:{67+2*i}]")
        self.tags = getattr(self, "tags", []) + [tag]
    def stamp_begin(self):
        if Asm.PROF:
            self.lines.append("s_memrealtime s[64:65]")
            self.stamp("begin")
    def finish(self, n):
        self.label(f"{n}_end")
        if Asm.PROF == "light":
            self("s_mov_b64 exec, -1", "s_waitcnt vmcnt(0)", "s_memrealtime s[66:67]", "s_waitcnt lgkmcnt(0)",
                 "s_bfe_u32 s97, s20, 0x40009", "s_lshl_b32 s97, s97, 16",
                 "s_lshl_b32 s96, s2, 3", "s_add_u32 s96, s96, s3", "s_lshl_b32 s96, s96, 4", "s_add_u32 s96, s96, s97", f"s_add_u32 s96, s96, {32<<20}",
                 "v_mov_b32 v2, s96", "v_mov_b32 v4, s64", "v_mov_b32 v5, s65", "v_mov_b32 v6, s66", "v_mov_b32 v7, s67",
                 "global_store_dwordx4 v2, v[4:7], s[22:23]")
        elif Asm.PROF:
            self("s_mov_b64 exec, -1")
            self.stamp("preend")
            self("s_waitcnt vmcnt(0)")
            self.stamp("end")
            self("s_memrealtime s[94:95]", "s_waitcnt lgkmcnt(0)",
                 "s_lshl_b32 s96, s2, 3", "s_add_u32 s96, s96, s3", "s_lshl_b32 s96, s96, 7", f"s_add_u32 s96, s96, {32<<20}",
                 "v_mov_b32 v2, s96")
            for i in range(16):
                self(f"v_mov_b32 v0, s{64+2*i}", f"v_mov_b32 v1, s{65+2*i}", f"global_store_dwordx2 v2, v[0:1], s[22:23] offset:{8*i}", "s_nop 1")
            print("stamps", n, self.tags)
        self.label(f"{n}_end2")
        self("s_endpgm")
    def comment(self, t):
        self.lines.append("; " + t)

def vr(b, n=1, k="v"):
    return f"{k}{b}" if n == 1 else f"{k}[{b}:{b+n-1}]"
def ar(b, n=1): return vr(b, n, "a")
def sr(b, n=1): return vr(b, n, "s")

_reg = re.compile(r"^(-|\|)?([vas])(\d+)\|?$")
_regr = re.compile(r"^(-|\|)?([vas])\[(\d+):(\d+)\]\|?$")

def regs_of(op):
    op = op.strip()
    m = _reg.match(op)
    if m: return {(m.group(2), int(m.group(3)))}
    m = _regr.match(op)
    if m: return {(m.group(2), i) for i in range(int(m.group(3)), int(m.group(4)) + 1)}
    if op == "vcc": return {("s", "vcc")}
    if op == "exec": return {("s", "exec")}
    if op == "m0": return {("s", "m0")}
    return set()

TRANS = ("v_exp_f32", "v_log_f32", "v_rcp_f32", "v_rsq_f32", "v_sqrt_f32", "v_sin_f32", "v_cos_f32", "v_rcp_iflag_f32")

class Ins:
    __slots__ = ("text", "mn", "ops", "kind", "w", "r", "mfma", "isnop", "nopn", "target", "uncond", "dpp")
    def __init__(self, text):
        self.text = text
        t = text.split(";")[0].strip()
        parts = t.split(None, 1)
        mn = parts[0]
        self.mn = mn
        rest = parts[1] if len(parts) > 1 else ""
        ops = []; cur = ""; depth = 0
        for ch in rest:
            if ch == "[": depth += 1
            if ch == "]": depth -= 1
            if ch == "," and depth == 0:
                ops.append(cur.strip()); cur = ""
            else: cur += ch
        if cur.strip(): ops.append(cur.strip())
        mods = ""
        if ops:
            sp = ops[-1].split(None, 1)
            if len(sp) > 1:
                ops[-1] = sp[0]; mods = sp[1]
        self.ops = ops
        self.w = set(); self.r = set(); self.mfma = None
        self.isnop = mn == "s_nop"; self.nopn = int(ops[0]) + 1 if self.isnop else 1
        self.target = None; self.uncond = False
        self.dpp = ("row_" in mods or "quad_perm" in mods or "wave_" in mods or "_dpp" in mn)
        R = lambda i: regs_of(ops[i]) if i < len(ops) else set()
        allr = lambda lo: set().union(*[regs_of(o) for o in ops[lo:]]) if len(ops) > lo else set()
        if mn.startswith("v_mfma"):
            self.kind = "mfma"
            self.w = R(0); self.r = allr(1)
            passes = 8 if "32x32" in mn else 4
            self.mfma = (passes, ops[0], ops[3], R(1) | R(2), R(3))
        elif mn.startswith("v_"):
            self.kind = "trans" if mn.replace("_e32", "").replace("_e64", "") in TRANS else "valu"
            if "permlane" in mn and "swap" in mn:
                self.w = R(0) | R(1); self.r = R(0) | R(1)
            elif mn.startswith(("v_add_co", "v_addc_co", "v_sub_co", "v_subb_co", "v_subrev_co")):
                self.w = R(0) | R(1); self.r = allr(2)
            elif mn.startswith("v_cmpx"):
                self.w = {("s", "exec")} | R(0); self.r = allr(1)
            else:
                self.w = R(0); self.r = allr(1)
                if mn.startswith(("v_fmac", "v_mac", "v_dot2c", "v_pk_fmac", "v_writelane")) or self.dpp:
                    self.r |= R(0)
        elif mn.startswith("ds_"):
            self.kind = "ds"
            if mn.startswith(("ds_read", "ds_bpermute", "ds_permute", "ds_swizzle")):
                self.w = R(0); self.r = allr(1)
            else:
                self.r = allr(0)
        elif mn.startswith(("global_", "buffer_", "flat_")):
            self.kind = "vmem"
            if "load_lds" in mn or (" lds" in (" " + mods)):
                self.r = allr(0) | {("s", "m0")}
            elif "load" in mn:
                self.w = R(0); self.r = allr(1)
            elif "atomic" in mn:
                self.r = allr(0)
            else:
                self.r = allr(0)
        elif mn.startswith("s_"):
            self.kind = "salu"
            if mn.startswith(("s_cbranch", "s_branch")):
                self.target = ops[0]; self.uncond = mn == "s_branch"
            elif mn == "s_endpgm":
                self.uncond = True
            elif mn.startswith(("s_cmp", "s_waitcnt", "s_barrier", "s_nop", "s_setprio", "s_sleep", "s_bitcmp")):
                self.r = allr(0)
            else:
                self.w = R(0); self.r = allr(1)
                if "saveexec" in mn: self.w |= {("s", "exec")}
        else:
            raise ValueError("unknown instr " + text)

def isvalu(i): return i.kind in ("valu", "trans")
def vg(S): return {x for x in S if x[0] in "va"}
def sg(S): return {x for x in S if x[0] == "s"}

def need(p, c):
    n = 0
    if p.kind == "mfma":
        passes, dtxt, ctxt, ab, cc = p.mfma
        big = passes == 8
        if c.kind == "mfma":
            cp, cd, cctxt, cab, ccc = c.mfma
            if p.w & cab: n = max(n, 12 if big else 8)
            if p.w & ccc:
                if not (cctxt == dtxt and cp == passes): n = max(n, 10 if big else 6)
        else:
            if p.w & (c.r | c.w): n = max(n, 12 if big else 8)
            if isvalu(c) and (cc & c.w): n = max(n, 7 if big else 3)
    if isvalu(p):
        pv = vg(p.w); ps = sg(p.w)
        if c.kind == "mfma" and (pv & c.r): n = max(n, 2)
        if p.kind == "trans" and (pv & c.r) and c.kind != "trans": n = max(n, 1)
        if isvalu(c):
            if ("permlane" in c.mn or c.dpp) and (pv & c.r): n = max(n, 2)
            if c.mn.startswith(("v_readlane", "v_readfirstlane")) and (pv & c.r): n = max(n, 1)
            if ps & c.r: n = max(n, 4 if c.mn.startswith(("v_readlane", "v_writelane")) else 2)
            if ("op_sel" in p.text or "dst_sel" in p.text) and not p.mn.startswith("v_pk_") and (pv & (c.r | c.w)): n = max(n, 1)
            if p.mn.startswith("v_dot") and (pv & (c.r | c.w)):
                same = c.mn == p.mn and c.ops[-1:] == p.ops[:1] and not (pv & (regs_of(c.ops[1]) | regs_of(c.ops[2])))
                if not same: n = max(n, 3)
        elif p.mn.startswith("v_dot") and (pv & (c.r | c.w)): n = max(n, 3)
        if c.kind == "vmem" and (ps & c.r): n = max(n, 5)
        if ("s", "exec") in ps and c.kind == "mfma": n = max(n, 4)
    if p.kind == "vmem" and ("store" in p.mn or "atomic" in p.mn) and ("x4" in p.mn or "x3" in p.mn):
        data = regs_of(p.ops[1])
        if data & c.w: n = max(n, 2 if isvalu(c) else 1)
    if p.kind == "salu" and ("s", "m0") in p.w and c.kind == "vmem" and ("s", "m0") in c.r: n = max(n, 1)
    return n

MAXW = 12
def fix_hazards(lines, verbose=False):
    items = []
    for l in lines:
        if l.startswith(";") or l.startswith("."):
            items.append(("x", l))
        elif l.endswith(":"):
            items.append(("l", l[:-1]))
        else:
            items.append(("i", Ins(l)))
    total = 0
    def maps():
        labels = {v: i for i, (k, v) in enumerate(items) if k == "l"}
        br = {}
        for i, (k, v) in enumerate(items):
            if k == "i" and v.target in labels:
                br.setdefault(labels[v.target], []).append(i)
        return br
    for rnd in range(3):
        branches = maps()
        i = 0; nins = 0
        while i < len(items):
            k, c = items[i]
            if k != "i" or c.isnop:
                i += 1; continue
            worst = 0
            stack = [(i - 1, 0, True)]; seen = {}
            while stack:
                j, d, ft = stack.pop()
                if j < 0 or d >= MAXW: continue
                kk, p = items[j]
                if kk == "i" and ft and p.uncond: continue
                if seen.get(j, 99) <= d: continue
                seen[j] = d
                if kk == "x": stack.append((j - 1, d, True)); continue
                if kk == "l":
                    stack.append((j - 1, d, True))
                    for b in branches.get(j, []): stack.append((b, d, False))
                    continue
                nd = need(p, c)
                if nd > d: worst = max(worst, nd - d)
                stack.append((j - 1, d + p.nopn, True))
            if worst:
                if verbose: print("nop", worst, "before", c.text)
                n = worst; total += n; nins += 1
                while n > 0:
                    m = min(n, 8); items.insert(i, ("i", Ins(f"s_nop {m-1}"))); n -= m; i += 1
                branches = maps()
            i += 1
        if nins == 0: break
    res = []
    for k, v in items:
        res.append(v if k == "x" else (v + ":" if k == "l" else v.text))
    return res, total
```

```python
from asmgen import *
from gen import *
import os

def gen_down1(mode):
    A = Asm(); n = f"down{mode}"
    sW, sPT, sCT, t0, t1, t2 = 3, 24, 25, 26, 27, 28
    sA = [30, 32, 34, 36]; sB = [38, 40, 42, 44]; sR, sO = 46, 48
    vLane, vQ, vL, vO0, vO1, vR = 2, 3, 4, 5, 6, 7
    vWk = [None, 8, 9, 10]; vRd = 11
    RES = 16
    ACC = 64; RD = 128
    q4 = lambda b: f"v[{b}:{b+3}]"
    p2 = lambda b: f"v[{b}:{b+1}]"
    SEG = not os.environ.get("OLDSEG")
    SH, O2 = (4, 64) if SEG else (5, 16)
    prologue(A, n, 256)
    TS = 56*1024
    A(f"v_lshrrev_b32 v1, 6, v0", f"v_and_b32 v{vLane}, 63, v0", f"v_readfirstlane_b32 s{sW}, v1",
      f"v_bfe_u32 v{vQ}, v0, 4, 2", f"v_and_b32 v{vL}, 15, v0",
      f"s_and_b32 s{t0}, s2, 7", f"s_lshl_b32 s{t0}, s{t0}, 2", f"s_lshr_b32 s{t1}, s2, 6", f"s_add_u32 s{sPT}, s{t0}, s{t1}",
      f"s_bfe_u32 s{sCT}, s2, 0x30003",
      f"s_mul_i32 s{t0}, s{sW}, {14*1024}", f"s_add_u32 s{t0}, s{t0}, 4096", f"v_lshl_add_u32 v{vO0}, v{vLane}, 4, s{t0}",
      f"v_add_u32 v{vO1}, 8192, v{vO0}",
      f"s_mul_i32 s{t0}, s{sPT}, {4*TS}", f"s_add_u32 s{t0}, s{t0}, {OFF['H'] + mode*LD}",
      f"s_mul_i32 s{t1}, s{sCT}, {4*TS}", f"s_add_u32 s{t1}, s{t1}, {OFF['W2P'] if mode == 0 else OFF['W2T']}")
    tA, tB = (t0, t1) if mode == 0 else (t1, t0)
    if mode == 0:
        A(f"s_lshl_b32 s{t2}, s{sCT}, 2", f"s_add_u32 s{t2}, s{t2}, s{sW}", f"s_lshl_b32 s{t2}, s{t2}, 16",
          f"s_lshl_b32 s{sR}, s{sPT}, 7", f"s_add_u32 s{t2}, s{t2}, s{sR}",
          f"v_lshlrev_b32 v{vR}, 12, v{vL}", f"v_lshl_add_u32 v{vR}, v{vQ}, {SH}, v{vR}", f"v_add_u32 v{vR}, s{t2}, v{vR}")
    else:
        A(f"s_lshl_b32 s{t2}, s{sPT}, 2", f"s_add_u32 s{t2}, s{t2}, s{sW}", f"s_lshl_b32 s{t2}, s{t2}, 14",
          f"s_lshl_b32 s{sR}, s{sCT}, 11", f"s_add_u32 s{t2}, s{t2}, s{sR}",
          f"v_lshl_add_u32 v{vR}, v{vLane}, 4, s{t2}")
    A("s_waitcnt lgkmcnt(0)")
    A.stamp("kernarg")
    sadd64(A, sA[0], WS, f"s{tA}")
    sadd64(A, sR, WS, OFF["ZB"] if mode == 0 else OFF["X3"])
    A(f"global_load_dwordx4 {q4(RES)}, v{vR}, s[{sR}:{sR+1}]", f"global_load_dwordx4 {q4(RES+4)}, v{vR}, s[{sR}:{sR+1}] offset:{O2 if mode == 0 else 1024}")
    for i in range(1, 4): sadd64(A, sA[i], sA[i-1], TS)
    for k in range(4):
        A(f"s_xor_b32 s{t2}, s{sW}, {k}", f"s_mul_i32 s{t2}, s{t2}, {TS}", f"s_add_u32 s{t2}, s{t2}, s{tB}")
        sadd64(A, sB[k], WS, f"s{t2}")
    def loads(kc):
        sl = kc % 8; v = vO0 if kc < 8 else vO1; off = (kc % 8)*1024 - 4096
        L = []
        order = [("B", 0), ("A", 0), ("A", 1), ("A", 2), ("A", 3), ("B", 1), ("B", 2), ("B", 3)]
        for t, i in order:
            r = 32*sl + (4*i if t == "A" else 16 + 4*i); s = (sA if t == "A" else sB)[i]
            L.append(f"global_load_dwordx4 a[{r}:{r+3}], v{v}, s[{s}:{s+1}] offset:{off}")
        return L
    DD = int(os.environ.get("DOWND", "4")); BAR = os.environ.get("DOWNBAR", "")
    for kc in range(DD): A(*loads(kc))
    A.stamp("issued")
    for k in range(1, 4):
        A(f"s_xor_b32 s{t2}, s{sW}, {k}", f"s_mul_i32 s{t2}, s{t2}, 3", f"s_add_u32 s{t2}, s{t2}, {k-1}", f"s_lshl_b32 s{t2}, s{t2}, 12",
          f"v_lshl_add_u32 v{vWk[k]}, v{vLane}, 4, s{t2}")
    A(f"s_mul_i32 s{t2}, s{sW}, {3*4096}", f"v_lshl_add_u32 v{vRd}, v{vLane}, 4, s{t2}")
    if mode == 1:
        A(f"s_bfe_u32 s{t2}, s{sPT}, 0x30001", f"s_lshl_b32 s{t2}, s{t2}, 8",
          f"s_lshl_b32 s{t0}, s{sW}, 1", f"s_add_u32 s{t2}, s{t2}, s{t0}",
          f"s_and_b32 s{t0}, s{sPT}, 1", f"s_lshl_b32 s{t0}, s{t0}, 3", f"s_add_u32 s{t2}, s{t2}, s{t0}",
          f"s_lshr_b32 s{t0}, s{sPT}, 4", f"s_lshl_b32 s{t0}, s{t0}, 4", f"s_add_u32 s{t2}, s{t2}, s{t0}",
          f"s_lshl_b32 s{t2}, s{t2}, 10", f"s_lshl_b32 s{t0}, s{sCT}, 7", f"s_add_u32 s{t2}, s{t2}, s{t0}",
          f"v_and_b32 v12, 7, v{vL}", f"v_lshlrev_b32 v12, 15, v12", f"v_lshrrev_b32 v13, 3, v{vL}", f"v_lshl_add_u32 v12, v13, 10, v12",
          f"v_lshl_add_u32 v12, v{vQ}, {SH}, v12", f"v_add_u32 v12, s{t2}, v12")
    for kc in range(14):
        sl = kc % 8
        N = 8*(min(13, kc+DD-1) - kc)
        A(f"s_waitcnt vmcnt({N})")
        if BAR and kc < 13: A("s_barrier")
        if kc in (0, 1, 4, 7, 10, 13): A.stamp(f"kc{kc}")
        mf = []
        for k in range(4):
            for mi in range(4):
                d = ACC + (k*4 + mi)*4
                c = "0" if kc == 0 else q4(d)
                mf.append(f"{MF} {q4(d)}, a[{32*sl+4*mi}:{32*sl+4*mi+3}], a[{32*sl+16+4*k}:{32*sl+16+4*k+3}], {c}")
        ld = loads(kc+DD) if kc + DD <= 13 else []
        for i, m in enumerate(mf):
            A(m)
            if ld and i % 2 == 1: A(ld.pop(0))
    A.stamp("loopend")
    for k in range(1, 4):
        for mi in range(4):
            d = ACC + (k*4 + mi)*4
            A(f"ds_write_b128 v{vWk[k]}, {q4(d)} offset:{1024*mi}")
    U = 32
    for r in range(8): A(f"v_lshlrev_b32 v{U+2*r}, 16, v{RES+r}", f"v_and_b32 v{U+2*r+1}, 0xffff0000, v{RES+r}")
    A("s_waitcnt lgkmcnt(0)", "s_barrier")
    A.stamp("bar")
    for k in range(3):
        for mi in range(4):
            r = RD + (k*4 + mi)*4
            A(f"ds_read_b128 {q4(r)}, v{vRd} offset:{4096*k + 1024*mi}")
    for k in range(3):
        A(f"s_waitcnt lgkmcnt({8 - 4*k})")
        for mi in range(4):
            d = ACC + 4*mi; r = RD + (k*4 + mi)*4
            for e in range(4): A(f"v_add_f32 v{d+e}, v{d+e}, v{r+e}")
    if mode == 1:
        for i in range(16): A(f"v_add_f32 v{ACC+i}, v{ACC+i}, v{U+i}")
    Rg = lambda m, jj: ACC + 4*m + jj
    if SEG:
        for jj in range(4): A(f"v_permlane32_swap_b32 v{Rg(0,jj)}, v{Rg(1,jj)}", f"v_permlane32_swap_b32 v{Rg(2,jj)}, v{Rg(3,jj)}")
    else:
        for jj in range(4): A(f"v_permlane32_swap_b32 v{Rg(0,jj)}, v{Rg(2,jj)}", f"v_permlane32_swap_b32 v{Rg(1,jj)}, v{Rg(3,jj)}")
    for jj in range(4): A(f"v_permlane16_swap_b32 v{Rg(0,jj)}, v{Rg(1,jj)}", f"v_permlane16_swap_b32 v{Rg(2,jj)}, v{Rg(3,jj)}")
    if mode == 0:
        for i in range(16): A(f"v_add_f32 v{ACC+i}, v{ACC+i}, v{U+i}")
    O = 48
    for r in range(8): A(f"v_cvt_pk_bf16_f32 v{O+r}, v{ACC+2*r}, v{ACC+2*r+1}")
    if mode == 0:
        sadd64(A, sO, WS, OFF["ZA"] + LD)
        A(f"global_store_dwordx4 v{vR}, {q4(O)}, s[{sO}:{sO+1}]{SC1}", f"global_store_dwordx4 v{vR}, {q4(O+4)}, s[{sO}:{sO+1}] offset:{O2}{SC1}")
        SQ = 96
        for i in range(16): A(f"v_mul_f32 v{SQ+i}, v{ACC+i}, v{ACC+i}")
        A(f"s_lshl_b32 s{t0}, s{sCT}, 2", f"s_add_u32 s{t0}, s{t0}, s{sW}", f"s_cmp_eq_u32 s{t0}, 31", f"s_cbranch_scc0 {n}_nomask",
          f"v_cmp_eq_u32 vcc, 15, v{vL}")
        for i in range(16): A(f"v_cndmask_b32 v{SQ+i}, v{SQ+i}, 0, vcc" if False else f"v_cndmask_b32_e64 v{SQ+i}, v{SQ+i}, 0, vcc")
        A.label(f"{n}_nomask")
        D = lambda dst, src, ctrl, bm: f"v_add_f32_dpp v{dst}, v{src}, v{src} {ctrl} row_mask:0xf bank_mask:{bm}"
        for i in range(8): A(D(SQ+i, SQ+i, "row_mirror", "0x3"))
        for i in range(8): A(D(SQ+i, SQ+8+i, "row_mirror", "0xc"))
        for i in range(4): A(D(SQ+i, SQ+i, "row_half_mirror", "0x5"))
        for i in range(4): A(D(SQ+i, SQ+4+i, "row_half_mirror", "0xa"))
        for i in range(4): A(D(SQ+i, SQ+i, "quad_perm:[2,3,0,1]", "0xf"))
        for i in range(4): A(D(SQ+i, SQ+i, "quad_perm:[1,0,3,2]", "0xf"))
        A(f"v_and_b32 v12, 1, v0", f"v_cmp_eq_u32 vcc, 1, v12", f"v_cndmask_b32 v{SQ}, v{SQ}, v{SQ+1}, vcc", f"v_cndmask_b32 v{SQ+2}, v{SQ+2}, v{SQ+3}, vcc",
          f"v_and_b32 v12, 2, v0", f"v_cmp_eq_u32 vcc, 2, v12", f"v_cndmask_b32 v{SQ}, v{SQ}, v{SQ+2}, vcc",
          f"v_lshlrev_b32 v12, 2, v0", f"ds_write_b32 v12, v{SQ} offset:49152", "s_waitcnt lgkmcnt(0)", "s_barrier",
          f"s_cmp_eq_u32 s{sW}, 0", f"s_cbranch_scc0 {n}_end")
        for k in range(4): A(f"ds_read_b32 v{SQ+4+k}, v12 offset:{49152 + 256*k}")
        A(f"s_lshl_b32 s{t0}, s{sPT}, 8", f"s_add_u32 s{t0}, s{t0}, {OFF['SSQ'] + LD}",
          *([f"v_bfe_u32 v13, v0, 3, 1", f"v_lshlrev_b32 v13, 5, v13", f"v_lshl_add_u32 v13, v{vQ}, 3, v13", f"v_and_b32 v12, 7, v0", f"v_add_u32 v12, v12, v13", f"v_lshlrev_b32 v12, 2, v12"] if SEG else []),
          f"v_add_u32 v12, s{t0}, v12", "s_waitcnt lgkmcnt(0)",
          f"v_add_f32 v{SQ+4}, v{SQ+4}, v{SQ+5}", f"v_add_f32 v{SQ+6}, v{SQ+6}, v{SQ+7}", f"v_add_f32 v{SQ+4}, v{SQ+4}, v{SQ+6}",
          f"global_atomic_add_f32 v12, v{SQ+4}, s[{WS}:{WS+1}]")
    else:
        A(f"global_store_dwordx4 v12, {q4(O)}, s[{OUT}:{OUT+1}]{SC1}", f"global_store_dwordx4 v12, {q4(O+4)}, s[{OUT}:{OUT+1}] offset:{O2}{SC1}")
    A.finish(n)
    return dict(name=f"down{mode}_kernel", lines=A.lines, vgpr=176 + 256, accum=176, sgpr=64, lds=49152 + 1024, grid=256, block=256)

def gen_down():
    return [gen_down1(0), gen_down1(1)]
```

```python
from asmgen import *
from gen import *
import os

def weave(mf, fill, per=2, start=0):
    out = []; f = list(fill)
    for i, m in enumerate(mf):
        out.append(m)
        if i >= start:
            for _ in range(per):
                if f: out.append(f.pop(0))
    return out + f

def gen_fft():
    A = Asm(); n = "fft"
    sW, sZ, sO, sSS, sWF, t0, t1 = 3, 24, 26, 28, 30, 32, 33
    vLane, vQ, vL = 2, 3, 4
    vZ, vS, vW, vR, vLA, vT0, vT1 = 5, 6, 7, 8, 9, 10, 11
    vTR = [12, 13, 14, 15]
    vM = 16
    ZR, ZI, SSQ, WF, RES = 20, 24, 28, 36, 44
    C64, S64, N64 = [52, 64], [56, 68], [60, 72]
    C32, S32, N32 = [76, 80], [84, 88], [92, 96]
    TC, TS = 100, 108
    AF = 116
    ACR, ACI = [148, 152], [156, 160]
    BR, BI = 164, 168
    XR, XI = [172, 176], [180, 184]
    WRu, WIu = 188, 196
    YR, YI = 204, 208
    OR_, OI = [212, 216], [220, 224]
    TMP = 228
    KC = 18
    sLD, sWL = 60, 34
    A(f"s_mov_b32 s{sLD}, 0")
    A.label("fft_body")
    prologue(A, n, 256)
    A(f"v_lshrrev_b32 v1, 6, v0", f"v_and_b32 v{vLane}, 63, v0", f"v_readfirstlane_b32 s{sW}, v1",
      f"v_bfe_u32 v{vQ}, v0, 4, 2", f"v_and_b32 v{vL}, 15, v0",
      f"v_lshlrev_b32 v{vZ}, 4, v0", f"v_lshlrev_b32 v{vS}, 5, v0",
      f"v_lshl_add_u32 v17, v1, 4, v{vL}", f"v_lshlrev_b32 v{vW}, 7, v17", f"v_lshl_add_u32 v{vW}, v{vQ}, 5, v{vW}",
      f"v_and_b32 v18, 1, v{vQ}", f"v_lshlrev_b32 v18, 3, v18", f"v_lshl_add_u32 v{vR}, v{vL}, 4, v18",
      f"v_lshrrev_b32 v18, 1, v{vQ}", f"v_lshl_add_u32 v{vR}, v18, 8, v{vR}",
      f"v_and_b32 v18, 1, v1", f"v_lshl_add_u32 v{vR}, v18, 9, v{vR}",
      f"v_lshrrev_b32 v18, 1, v1", f"v_lshl_add_u32 v{vR}, v18, 10, v{vR}",
      f"s_lshl_b32 s{t0}, s2, 13",
      "s_waitcnt lgkmcnt(0)")
    A.stamp("kernarg")
    A(f"s_add_u32 s{t1}, s{t0}, {OFF['ZA'] + 4096}", f"s_add_u32 s{t1}, s{t1}, s{sLD}"); sadd64(A, sZ, WS, f"s{t1}")
    A(f"s_add_u32 s{t1}, s{sLD}, {OFF['SSQ']}"); sadd64(A, sSS, WS, f"s{t1}")
    A(f"global_load_dwordx4 v[{SSQ}:{SSQ+3}], v{vS}, s[{sSS}:{sSS+1}]",
      f"global_load_dwordx4 v[{SSQ+4}:{SSQ+7}], v{vS}, s[{sSS}:{sSS+1}] offset:16",
      f"global_load_dwordx4 v[{ZR}:{ZR+3}], v{vZ}, s[{sZ}:{sZ+1}] offset:-4096",
      f"global_load_dwordx4 v[{ZI}:{ZI+3}], v{vZ}, s[{sZ}:{sZ+1}]")
    A(f"s_add_u32 s{t1}, s{t0}, {OFF['WF']}"); sadd64(A, sWF, WS, f"s{t1}")
    A(f"global_load_dwordx4 v[{WF}:{WF+3}], v{vW}, s[{sWF}:{sWF+1}]",
      f"global_load_dwordx4 v[{WF+4}:{WF+7}], v{vW}, s[{sWF}:{sWF+1}] offset:16")
    for pl in range(2):
        for nt in range(2):
            r = RES + 4*pl + 2*nt
            A(f"global_load_dwordx2 v[{r}:{r+1}], v{vR}, s[{sZ}:{sZ+1}] offset:{-4096 + 4096*pl + 2048*nt}")
    sadd64(A, sO, sZ, OFF["ZB"] - OFF["ZA"])
    PFW = bool(os.environ.get("PFW"))
    if PFW:
        A(f"s_bfe_u32 s{t1}, s2, 0x20001", f"s_lshl_b32 s{t1}, s{t1}, 20", f"s_lshr_b32 s{sWL}, s2, 3", f"s_lshl_b32 s{sWL}, s{sWL}, 2", f"s_add_u32 s{sWL}, s{sWL}, s{sW}",
          f"s_lshl_b32 s{sWL}, s{sWL}, 13", f"s_add_u32 s{t1}, s{t1}, s{sWL}", f"s_add_u32 s{t1}, s{t1}, {OFF['W13']}",
          f"v_lshl_add_u32 v252, v{vLane}, 7, s{t1}", f"global_load_dword v253, v252, s[{WS}:{WS+1}]")
    A.stamp("issued")
    A(f"v_bfe_i32 v{vM}, v0, 0, 1", f"v_and_b32 v{vM}, 0x80008000, v{vM}",
      f"v_cvt_f32_u32 v17, v17",
      f"v_cvt_f32_u32 v19, v{vQ}")
    T = AF
    A(f"v_mul_f32 v18, {fl(1/64)}, v17", f"v_mul_f32 v{T}, {fl(8.0)}, v19", f"v_mul_f32 v{T}, v{T}, v18")
    for e in range(1, 8): A(f"v_add_f32 v{T+e}, v{T+e-1}, v18")
    for e in range(8): A(f"v_cos_f32 v{T+8+e}, v{T+e}", f"v_sin_f32 v{T+16+e}, v{T+e}")
    for r in range(4):
        A(f"v_cvt_pk_bf16_f32 v{C64[0]+r}, v{T+8+2*r}, v{T+9+2*r}", f"v_cvt_pk_bf16_f32 v{S64[0]+r}, v{T+16+2*r}, v{T+17+2*r}")
    for r in range(4):
        A(f"v_xor_b32 v{N64[0]+r}, 0x80008000, v{S64[0]+r}", f"v_xor_b32 v{C64[1]+r}, v{vM}, v{C64[0]+r}",
          f"v_xor_b32 v{S64[1]+r}, v{vM}, v{S64[0]+r}")
    for r in range(4): A(f"v_xor_b32 v{N64[1]+r}, v{vM}, v{N64[0]+r}")
    A(f"v_mul_f32 v18, {fl(1/2048)}, v17", f"v_mul_f32 v{T}, {fl(4.0)}, v19", f"v_mul_f32 v{T}, v{T}, v18")
    for i in range(1, 8):
        mt, jj = i >> 2, i & 3
        if i == 4: A(f"v_fma_f32 v{T+4}, v18, {fl(16.0)[0:0] or 'v' + str(T+8)}, v{T}" if False else f"v_mul_f32 v{T+8}, {fl(16.0)}, v18", f"v_add_f32 v{T+4}, v{T}, v{T+8}")
        else: A(f"v_add_f32 v{T+i}, v{T+i-1}, v18")
    for i in range(8): A(f"v_cos_f32 v{TC+i}, v{T+i}", f"v_sin_f32 v{TS+i}, v{T+i}")
    A(f"v_cvt_f32_u32 v18, v{vL}", f"v_mul_f32 v18, {fl(1/32)}, v18", f"v_mul_f32 v{T}, {fl(4.0)}, v19", f"v_mul_f32 v{T}, v{T}, v18")
    for e in range(1, 4): A(f"v_add_f32 v{T+e}, v{T+e-1}, v18")
    for e in range(4): A(f"v_cos_f32 v{T+8+e}, v{T+e}", f"v_sin_f32 v{T+16+e}, v{T+e}")
    for r in range(2):
        A(f"v_cvt_pk_bf16_f32 v{C32[0]+r}, v{T+8+2*r}, v{T+9+2*r}", f"v_cvt_pk_bf16_f32 v{S32[0]+r}, v{T+16+2*r}, v{T+17+2*r}")
    for r in range(2):
        A(f"v_xor_b32 v{C32[0]+2+r}, v{vM}, v{C32[0]+r}", f"v_xor_b32 v{S32[0]+2+r}, v{vM}, v{S32[0]+r}")
    for r in range(4):
        A(f"v_xor_b32 v{C32[1]+r}, 0x80000000, v{C32[0]+r}", f"v_xor_b32 v{S32[1]+r}, 0x80000000, v{S32[0]+r}",
          f"v_xor_b32 v{N32[0]+r}, 0x80008000, v{S32[0]+r}")
    for r in range(4): A(f"v_xor_b32 v{N32[1]+r}, 0x80000000, v{N32[0]+r}")
    A(f"v_lshlrev_b32 v{vLA}, 4, v{vLane}",
      f"v_lshl_add_u32 v17, v1, 4, v{vL}", f"v_bfe_u32 v18, v17, 1, 3", f"v_xor_b32 v18, v18, v{vQ}",
      f"v_lshlrev_b32 v18, 3, v18", f"v_lshl_add_u32 v{vT0}, v17, 6, v18", f"v_add_u32 v{vT0}, 8192, v{vT0}",
      f"v_xor_b32 v{vT1}, 32, v{vT0}",
      f"v_bfe_u32 v17, v0, 2, 2", f"v_and_b32 v18, 3, v0",
      f"v_lshl_add_u32 v19, v{vQ}, 3, v17", f"v_lshlrev_b32 v19, 6, v19",
      f"v_lshrrev_b32 v17, 1, v17", f"v_xor_b32 v18, v18, v17",
      f"v_and_b32 v17, 1, v{vQ}", f"v_lshlrev_b32 v17, 2, v17", f"v_xor_b32 v18, v18, v17",
      f"v_lshl_add_u32 v19, v18, 3, v19", f"v_add_u32 v{vTR[0]}, 8192, v19",
      f"v_xor_b32 v{vTR[1]}, {256 + 16}, v{vTR[0]}", f"v_xor_b32 v{vTR[2]}, 32, v{vTR[0]}", f"v_xor_b32 v{vTR[3]}, 32, v{vTR[1]}",
      f"v_mov_b32 v{KC}, {fl(8192.0)}", f"v_mov_b32 v{KC+1}, {fl(1e-5 * 2**22)}")
    A.stamp("consts")
    A(f"s_waitcnt vmcnt({8 + PFW})")
    A.stamp("ssq")
    RS = TMP
    for r in range(4):
        A(f"v_pk_fma_f32 v[{RS+2*r}:{RS+2*r+1}], v[{SSQ+2*r}:{SSQ+2*r+1}], v[{KC}:{KC+1}], v[{KC}:{KC+1}] op_sel:[0,0,1] op_sel_hi:[1,0,1]")
    for e in range(8): A(f"v_rsq_f32 v{RS+e}, v{RS+e}")
    A(f"s_waitcnt vmcnt({6 + PFW})", "s_cmp_eq_u32 s2, 255", f"s_cbranch_scc0 {n}_nz")
    for r in range(4): A(f"v_mov_b32 v{ZI+r}, 0")
    A.label(f"{n}_nz")
    for pl, Z in enumerate((ZR, ZI)):
        U = AF + 8*pl
        for r in range(4): A(f"v_lshlrev_b32 v{U+2*r}, 16, v{Z+r}", f"v_and_b32 v{U+2*r+1}, 0xffff0000, v{Z+r}")
        for r in range(4): A(f"v_pk_mul_f32 v[{U+2*r}:{U+2*r+1}], v[{U+2*r}:{U+2*r+1}], v[{RS+2*r}:{RS+2*r+1}]")
        for r in range(4): A(f"v_cvt_pk_bf16_f32 v{Z+r}, v{U+2*r}, v{U+2*r+1}")
        A(f"ds_write_b128 v{vZ}, v[{Z}:{Z+3}] offset:{4096*pl}")
    A("s_waitcnt lgkmcnt(0)", "s_barrier")
    A.stamp("bar1")
    def af(pl, mt, ks): return AF + 4*(4*mt + 2*ks + pl)
    for mt in range(2):
        for ks in range(2):
            for pl in range(2):
                r = af(pl, mt, ks)
                A(f"ds_read_b128 v[{r}:{r+3}], v{vLA} offset:{4096*pl + 1024*ks + 2048*mt}")
    def q4(b): return f"v[{b}:{b+3}]"
    def p2(b): return f"v[{b}:{b+1}]"
    def s1(mt):
        L = []
        for ks in range(2):
            c0 = lambda d: "0" if ks == 0 else q4(d)
            L += [f"{MF} {q4(ACR[mt])}, {q4(af(0,mt,ks))}, {q4(C64[ks])}, {c0(ACR[mt])}",
                  f"{MF} {q4(ACI[mt])}, {q4(af(1,mt,ks))}, {q4(C64[ks])}, {c0(ACI[mt])}",
                  f"{MF} {q4(ACR[mt])}, {q4(af(1,mt,ks))}, {q4(S64[ks])}, {q4(ACR[mt])}",
                  f"{MF} {q4(ACI[mt])}, {q4(af(0,mt,ks))}, {q4(N64[ks])}, {q4(ACI[mt])}"]
        return L
    def unpack(dst, src, nreg):
        L = []
        for r in range(nreg): L += [f"v_lshlrev_b32 v{dst+2*r}, 16, v{src+r}", f"v_and_b32 v{dst+2*r+1}, 0xffff0000, v{src+r}"]
        return L
    def cmul(dr, di, c, s, conj, outr, outi, tmp):
        L = []
        for p in range(2):
            a, b, cc, ss = dr+2*p, di+2*p, c+2*p, s+2*p
            t = tmp + 8*p
            L += [f"v_pk_mul_f32 {p2(t)}, {p2(b)}, {p2(ss)}", f"v_pk_mul_f32 {p2(t+2)}, {p2(a)}, {p2(ss)}"]
            if not conj:
                L += [f"v_pk_fma_f32 {p2(t+4)}, {p2(a)}, {p2(cc)}, {p2(t)}",
                      f"v_pk_fma_f32 {p2(t+6)}, {p2(b)}, {p2(cc)}, {p2(t+2)} neg_lo:[0,0,1] neg_hi:[0,0,1]"]
            else:
                L += [f"v_pk_fma_f32 {p2(t+4)}, {p2(a)}, {p2(cc)}, {p2(t)} neg_lo:[0,0,1] neg_hi:[0,0,1]",
                      f"v_pk_fma_f32 {p2(t+6)}, {p2(b)}, {p2(cc)}, {p2(t+2)}"]
        for p in range(2):
            t = tmp + 8*p
            L += [f"v_cvt_pk_bf16_f32 v{outr+p}, v{t+4}, v{t+5}", f"v_cvt_pk_bf16_f32 v{outi+p}, v{t+6}, v{t+7}"]
        return L
    TA, TB = TMP, AF
    TMP2 = 188 + 16 + 40
    TMP2 = 244 - 16
    m0 = s1(0); m1 = s1(1)
    A("s_waitcnt lgkmcnt(6)", *m0[:4], "s_waitcnt lgkmcnt(4)", *m0[4:])
    fill = [f"s_waitcnt vmcnt({4 + PFW})"] + unpack(WRu, WF, 4)[:5] + cmul(ACR[0], ACI[0], TC, TS, False, BR, BI, TMP)
    A("s_waitcnt lgkmcnt(2)", *weave(m1[:4], fill[:6 + 2], per=2), "s_waitcnt lgkmcnt(0)", *weave(m1[4:], fill[8:], per=2))
    rest = unpack(WRu, WF, 4)[5:] + unpack(WIu, WF+4, 4)
    A(*rest[:8])
    A(*cmul(ACR[1], ACI[1], TC+4, TS+4, False, BR+2, BI+2, TMP))
    A.stamp("st1")
    def s2(mt):
        return [f"{MF} {q4(XR[mt])}, {q4(C32[mt])}, {q4(BR)}, 0", f"{MF} {q4(XI[mt])}, {q4(C32[mt])}, {q4(BI)}, 0",
                f"{MF} {q4(XR[mt])}, {q4(S32[mt])}, {q4(BI)}, {q4(XR[mt])}", f"{MF} {q4(XI[mt])}, {q4(N32[mt])}, {q4(BR)}, {q4(XI[mt])}"]
    A(*weave(s2(0), rest[8:], per=2))
    ru = [f"s_waitcnt vmcnt({1 if PFW else 0})"]
    for pl in range(2):
        for nt in range(2):
            ru += unpack((OR_, OI)[pl][nt], RES + 4*pl + 2*nt, 2)
    A(*weave(s2(1), ru[:9], per=2))
    A(*ru[9:13])
    A(*cmul(XR[0], XI[0], WRu, WIu, True, YR, YI, TMP))
    A(*cmul(XR[1], XI[1], WRu+4, WIu+4, True, YR+2, YI+2, TMP))
    A.stamp("st2")
    def s3(mt):
        return [f"{MF} {q4(ACR[mt])}, {q4(C32[mt])}, {q4(YR)}, 0", f"{MF} {q4(ACI[mt])}, {q4(C32[mt])}, {q4(YI)}, 0",
                f"{MF} {q4(ACR[mt])}, {q4(N32[mt])}, {q4(YI)}, {q4(ACR[mt])}", f"{MF} {q4(ACI[mt])}, {q4(S32[mt])}, {q4(YR)}, {q4(ACI[mt])}"]
    A(*s3(0))
    A(*weave(s3(1), ru[13:], per=2))
    for mt in range(2):
        ur, ui = BR + 2*mt, BI + 2*mt
        A(*cmul(ACR[mt], ACI[mt], TC+4*mt, TS+4*mt, True, ur, ui, TMP))
        va = vT1 if mt else vT0
        A(f"ds_write_b64 v{va}, {p2(ur)}", f"ds_write_b64 v{va}, {p2(ui)} offset:4096")
    A("s_waitcnt lgkmcnt(0)", "s_barrier")
    A.stamp("bar2")
    def bf(pl, nt, ks): return AF + 4*(4*nt + 2*ks + pl)
    def trreads(nt, ks):
        L = []
        for pl in range(2):
            for h in range(2):
                r = bf(pl, nt, ks) + 2*h
                L.append(f"ds_read_b64_tr_b16 {p2(r)}, v{vTR[2*nt+h]} offset:{4096*pl + 2048*ks}")
        return L
    A(*trreads(0, 0), *trreads(0, 1), *trreads(1, 0))
    def fin(pl, nt, ks):
        if pl == 0:
            return [f"{MF} {q4(OR_[nt])}, {q4(C64[ks])}, {q4(bf(0,nt,ks))}, {q4(OR_[nt])}",
                    f"{MF} {q4(OR_[nt])}, {q4(N64[ks])}, {q4(bf(1,nt,ks))}, {q4(OR_[nt])}"]
        return [f"{MF} {q4(OI[nt])}, {q4(C64[ks])}, {q4(bf(1,nt,ks))}, {q4(OI[nt])}",
                f"{MF} {q4(OI[nt])}, {q4(S64[ks])}, {q4(bf(0,nt,ks))}, {q4(OI[nt])}"]
    A("s_cmp_eq_u32 s2, 255", f"s_cbranch_scc1 {n}_last")
    A("s_waitcnt lgkmcnt(8)", *weave(fin(0, 0, 0) + fin(1, 0, 0), trreads(1, 1), per=1))
    A("s_waitcnt lgkmcnt(8)", *fin(0, 0, 1), *fin(1, 0, 1))
    A("s_waitcnt lgkmcnt(4)", *fin(0, 1, 0), *fin(1, 1, 0))
    A("s_waitcnt lgkmcnt(0)", *fin(0, 1, 1), *fin(1, 1, 1))
    A(f"s_branch {n}_out")
    A.label(f"{n}_last")
    A("s_waitcnt lgkmcnt(8)", *trreads(1, 1), "s_waitcnt lgkmcnt(0)")
    for nt in range(2):
        for ks in range(2): A(*fin(0, nt, ks))
    A.label(f"{n}_out")
    if os.environ.get("FFTX2"):
        for nt in range(2):
            for pl in range(2):
                o = (OR_, OI)[pl][nt]; r = TMP + 2*(2*nt + pl)
                A(f"v_cvt_pk_bf16_f32 v{r}, v{o}, v{o+1}", f"v_cvt_pk_bf16_f32 v{r+1}, v{o+2}, v{o+3}",
                  f"global_store_dwordx2 v{vR}, {p2(r)}, s[{sO}:{sO+1}] offset:{-4096 + 4096*pl + 2048*nt}{SC1}")
    else:
        A(f"v_and_b32 v18, 1, v{vQ}", f"v_mul_u32_u24 v18, {2048 - 8}, v18", f"v_add_u32 v17, v18, v{vR}")
        for pl in range(2):
            r = TMP + 4*pl
            for nt in range(2):
                o = (OR_, OI)[pl][nt]
                A(f"v_cvt_pk_bf16_f32 v{r+2*nt}, v{o}, v{o+1}", f"v_cvt_pk_bf16_f32 v{r+2*nt+1}, v{o+2}, v{o+3}")
            A(f"v_permlane16_swap_b32 v{r}, v{r+2}", f"v_permlane16_swap_b32 v{r+1}, v{r+3}",
              f"global_store_dwordx4 v17, {q4(r)}, s[{sO}:{sO+1}] offset:{-4096 + 4096*pl}{SC1}")
    A.finish(n)
    return [dict(name="fft0_kernel", lines=A.lines, vgpr=256, accum=256, sgpr=64, lds=16384, grid=256, block=256),
            dict(name="fft1_kernel", lines=[f"s_mov_b32 s{sLD}, {LD}", "s_branch fft_body"], vgpr=256, accum=256, sgpr=64, lds=16384, grid=256, block=256)]
```

```python
from asmgen import *
from gen import *
import os

def hoist_m0(flat):
    out = list(flat)
    i = 0
    while i < len(out):
        if out[i].startswith("s_add_u32 m0"):
            j = i
            while j > 0 and not out[j-1].startswith("global_load_lds") and "m0" not in out[j-1]:
                out[j-1], out[j] = out[j], out[j-1]; j -= 1
                if out[j+1].startswith("v_mfma"): break
        i += 1
    return out

def gen_glu(R=4, DELTA=None):
    if DELTA is None: DELTA = int(os.environ.get("DELTA", "4"))
    X = os.environ.get("GLUX", "")
    A = Asm(); n = "glu"
    sW, sPH, sWFv, sRT, sJ = 3, 24, 25, 26, 27
    sZ, sWA, sWB, sMZ, sMA, sMT, t0, t1, t2 = 28, 30, 32, 34, 35, 36, 37, 38, 39
    sHk = [40, 41, 42, 43]; sEX = 44; sPF = 46; sM1, sM2, sM3 = 48, 50, 52; sWT = 54; sLAY = 60; sLDv = 61
    vLane, vQ, vL, vZo, vWo, vA = 2, 3, 4, 5, 6, 7
    vB = [8, 9, 10, 11]
    vStW, vMask, vAT, vPF, vPD = 12, 13, 16, 17, 18
    ST = 24
    AFR = [32, 48]; ACC = 64; GR = 128; OP = 132; TM = 148
    NB = DELTA + 2
    BFR = lambda u: 160 + 16 * (u % NB)
    assert 160 + 16*NB <= 256
    ZS = lambda s: (s % R) * 8192
    WBASE = R * 8192
    WSL = lambda s: (s % R) * 16384
    XA = WBASE + R * 16384
    STAT = XA + DELTA * 8192
    q4 = lambda b: f"v[{b}:{b+3}]"
    p2 = lambda b: f"v[{b}:{b+1}]"
    A(f"s_mov_b32 s{sLAY}, 0")
    A.label("glu_body")
    prologue(A, n, 256)
    A(f"v_lshrrev_b32 v1, 6, v0", f"v_and_b32 v{vLane}, 63, v0", f"v_readfirstlane_b32 s{sW}, v1",
      f"v_bfe_u32 v{vQ}, v0, 4, 2", f"v_and_b32 v{vL}, 15, v0",
      f"s_and_b32 s{t0}, s2, 1", f"s_lshl_b32 s{t0}, s{t0}, 3", f"s_bfe_u32 s{t1}, s2, 0x30003", f"s_add_u32 s{sRT}, s{t0}, s{t1}",
      f"s_bfe_u32 s{t0}, s2, 0x20001", f"s_lshl_b32 s{t0}, s{t0}, 2", f"s_lshr_b32 s{t1}, s2, 6", f"s_add_u32 s{sJ}, s{t0}, s{t1}",
      f"s_lshr_b32 s{sPH}, s{sW}, 2", f"s_and_b32 s{sWFv}, s{sW}, 3",
      f"s_bfe_u32 s{t0}, s{sW}, 0x10001", f"s_lshl_b32 s{t0}, s{t0}, 2",
      f"v_or_b32 v14, s{t0}, v{vQ}", f"v_lshlrev_b32 v14, 1, v14", f"v_xor_b32 v14, v14, v{vL}", f"v_lshlrev_b32 v14, 4, v14",
      f"s_lshl_b32 s{t0}, s{sW}, 2", f"v_add_u32 v15, s{t0}, v{vQ}", f"v_lshl_add_u32 v{vZo}, v15, 12, v14",
      f"v_lshlrev_b32 v{vWo}, 4, v{vLane}",
      f"s_lshl_b32 s{sMZ}, s{sW}, 10",
      f"s_lshr_b32 s{t0}, s{sW}, 1", f"s_lshl_b32 s{t0}, s{t0}, 2", f"s_and_b32 s{t1}, s{sW}, 1", f"s_add_u32 s{t2}, s{t0}, s{t1}", f"s_lshl_b32 s{t2}, s{t2}, 10",
      f"s_add_u32 s{sMA}, s{t2}, {WBASE}", f"s_add_u32 s{sMT}, s{sMZ}, {XA}",
      f"s_mul_i32 s{sLDv}, s{sLAY}, {LD}", f"s_lshl_b32 s{t0}, s{sRT}, 8", f"s_add_u32 s{t0}, s{t0}, {OFF['ZB']}", f"s_add_u32 s{t0}, s{t0}, s{sLDv}",
      f"s_lshl_b32 s{t1}, s{sJ}, 18", f"s_add_u32 s{t1}, s{t1}, {OFF['W13']}", f"s_add_u32 s{t1}, s{t1}, s{t2}",
      f"s_lshr_b32 s{sPF}, s2, 3", f"s_lshl_b32 s{sPF}, s{sPF}, 3", f"s_add_u32 s{sPF}, s{sPF}, s{sW}", f"s_mul_i32 s{sPF}, s{sPF}, 7168",
      f"s_lshl_b32 s{t2}, s{sLAY}, 21", f"s_add_u32 s{sPF}, s{sPF}, s{t2}", f"s_add_u32 s{sPF}, s{sPF}, {OFF['W2P'] + 4096}",
      (f"v_lshrrev_b32 v{vPF}, 4, v{vLane}" if "f" in X else f"v_and_b32 v{vPF}, 3, v{vLane}"), f"v_lshl_add_u32 v{vPF}, v{vPF}, 7, s{sPF}",
      f"s_lshr_b32 s{t2}, s{sJ}, 1", f"s_cmp_eq_u32 s{t2}, 7", f"s_cselect_b32 s{t2}, 1, 0", f"s_cmp_gt_u32 s{t2}, s{sLAY}",
      "s_waitcnt lgkmcnt(0)", f"s_cbranch_scc1 {n}_skip")
    A.stamp("kernarg")
    sadd64(A, sZ, WS, f"s{t0}"); sadd64(A, sWA, WS, f"s{t1}"); sadd64(A, sWB, sWA, 2048); sadd64(A, sWT, sWA, 2048 + (16 - DELTA)*16384)
    def piece(kind, idx):
        if kind == "Z":
            return [f"s_add_u32 m0, s{sMZ}, {ZS(idx)}", f"global_load_lds_dwordx4 v{vZo}, s[{sZ}:{sZ+1}]",
                    f"s_add_u32 s{sZ}, s{sZ}, 131072", f"s_addc_u32 s{sZ+1}, s{sZ+1}, 0"]
        if kind == "A":
            return [f"s_add_u32 m0, s{sMA}, {WSL(idx)}", f"global_load_lds_dwordx4 v{vWo}, s[{sWA}:{sWA+1}]",
                    f"s_add_u32 s{sWA}, s{sWA}, 16384", f"s_addc_u32 s{sWA+1}, s{sWA+1}, 0"]
        if kind == "B":
            return [f"s_add_u32 m0, s{sMA}, {WSL(idx) + 2048}", f"global_load_lds_dwordx4 v{vWo}, s[{sWB}:{sWB+1}]",
                    f"s_add_u32 s{sWB}, s{sWB}, 16384", f"s_addc_u32 s{sWB+1}, s{sWB+1}, 0"]
        if kind == "T":
            return [f"s_add_u32 m0, s{sMT}, {idx*8192}", f"global_load_lds_dwordx4 v{vWo}, s[{sWT}:{sWT+1}]",
                    f"s_add_u32 s{sWT}, s{sWT}, 16384", f"s_addc_u32 s{sWT+1}, s{sWT+1}, 0"]
        if kind == "P":
            ld = f"global_load_dword v{vPD}, v{vPF}, s[{WS}:{WS+1}] offset:{-4096 + 512*idx}"
            return [ld] if "f" in X else ["s_mov_b64 exec, 15", ld, "s_mov_b64 exec, -1"]
    order = []
    for u in range(16):
        order += [("Z", u), ("A", u)] + ([("B", u)] if u >= DELTA else [])
    P0 = int(os.environ.get("P0", "6"))
    caps = [3]*DELTA + [4]*(16 - DELTA)
    if os.environ.get("CAPS"): caps = [int(c) for c in os.environ["CAPS"]]
    PS0 = int(os.environ.get("PS0", "1")); TS0 = int(os.environ.get("TS0", "8"))
    extras = {}
    for i in range(DELTA): extras.setdefault(TS0 + i, []).append(("T", i))
    for i in range(14): extras.setdefault(min(PS0 + i, 14), []).append(("P", i))
    if "p" in X:
        for k in list(extras): extras[k] = [e for e in extras[k] if e[0] != "P"]
    sched = []; pos = P0
    for u in range(16):
        ex = extras.get(u, [])
        L = []
        nT = sum(1 for e in ex if e[0] == "T")
        while pos < len(order) and len(L) < max(caps[u] - nT, 3 if u >= DELTA else 0) and order[pos][1] <= u + R:
            L.append(order[pos]); pos += 1
        sched.append(L + ex)
    assert pos == len(order)
    issued = list(order[:P0])
    def outstanding_after(pred):
        last = max(i for i, p in enumerate(issued) if pred(p))
        return len(issued) - 1 - last
    for p in order[:P0]: A(*piece(*p))
    A.stamp("dmaissued")
    A(f"s_lshl_b32 s{t0}, s{sWFv}, 12", f"s_add_u32 s{t0}, s{t0}, {WBASE}", f"v_add_u32 v{vA}, s{t0}, v{vWo}",
      f"s_lshl_b32 s{t0}, s{sWFv}, 11", f"s_add_u32 s{t0}, s{t0}, {XA}", f"v_add_u32 v{vAT}, s{t0}, v{vWo}",
      f"v_bfe_u32 v14, v0, 2, 2", f"v_lshl_add_u32 v15, v{vQ}, 3, v14", f"v_lshlrev_b32 v15, 8, v15",
      f"v_and_b32 v19, 1, v{vQ}", f"v_lshl_add_u32 v14, v19, 2, v14",
      f"s_lshl_b32 s{t0}, s{sPH}, 2", f"s_add_u32 s{t0}, s{t0}, s{sWFv}", f"v_xor_b32 v14, s{t0}, v14",
      f"v_lshl_add_u32 v15, v14, 5, v15", f"v_and_b32 v14, 3, v0", f"v_lshl_add_u32 v{vB[0]}, v14, 3, v15")
    for k in range(1, 4): A(f"v_xor_b32 v{vB[k]}, {32*k}, v{vB[0]}")
    A(f"v_and_b32 v14, 3, v{vL}", f"v_cmp_eq_u32 s[{sM1}:{sM1+1}], 1, v14", f"v_cmp_eq_u32 s[{sM2}:{sM2+1}], 2, v14", f"v_cmp_eq_u32 s[{sM3}:{sM3+1}], 3, v14",
      f"s_lshl_b32 s{t0}, s{sW}, 6", f"s_add_u32 s{t0}, s{t0}, {STAT}", f"v_lshl_add_u32 v15, v{vL}, 2, s{t0}",
      f"v_lshlrev_b32 v19, 2, v{vLane}", f"v_add_u32 v19, {STAT + 512}, v19", f"v_lshrrev_b32 v14, 2, v{vL}", f"v_cmp_eq_u32 vcc, v14, v{vQ}",
      f"v_cndmask_b32 v{vStW}, v19, v15, vcc", f"v_mov_b32 v19, v15",
      f"s_cmp_ge_u32 s{sJ}, 14", f"s_cselect_b32 s{t0}, -1, 0xffff", f"v_mov_b32 v14, s{t0}", f"v_cmp_eq_u32 vcc, 3, v{vQ}", f"v_cndmask_b32 v{vMask}, -1, v14, vcc")
    vStR = 19
    def readsZ(u):
        b = BFR(u)
        return [f"ds_read_b64_tr_b16 {p2(b+4*k+2*h)}, v{vB[k]} offset:{ZS(u) + 1024*h}" for k in range(4) for h in range(2)]
    def reads(u):
        a = AFR[u & 1]
        z = readsZ(u)
        w = [f"ds_read_b128 {q4(a+4*t)}, v{vA} offset:{WSL(u) + 1024*t}" for t in range(4) if t < 2 or u >= DELTA]
        return z[:2] + w + z[2:]
    def treads(i):
        a = AFR[(16 + i) & 1]
        return [f"ds_read_b128 {q4(a+4*t)}, v{vAT} offset:{i*8192 + 1024*(t-2)}" for t in (2, 3)]
    acc = lambda t, k: ACC + (t*4 + k)*4
    first = set()
    def mfma(t, k, a, b):
        d = acc(t, k); c = q4(d) if (t, k) in first else "0"; first.add((t, k))
        return f"{MF} {q4(d)}, {q4(a+4*t)}, {q4(b+4*k)}, {c}"
    def haddr():
        L = [f"s_lshl_b32 s{t0}, s{sRT}, 3", f"s_lshl_b32 s{t1}, s{sPH}, 2", f"s_add_u32 s{t0}, s{t0}, s{t1}", f"s_add_u32 s{t0}, s{t0}, s{sWFv}",
             f"s_lshl_b32 s{t1}, s{sJ}, 2", f"s_add_u32 s{t1}, s{t1}, s{sWFv}", f"s_lshl_b32 s{t1}, s{t1}, 10", f"s_add_u32 s{t1}, s{t1}, {OFF['H']}", f"s_add_u32 s{t1}, s{t1}, s{sLDv}"]
        for k in range(4):
            L += [f"s_xor_b32 s{sHk[k]}, s{t0}, {k}", f"s_mul_i32 s{sHk[k]}, s{sHk[k]}, {56*1024}", f"s_add_u32 s{sHk[k]}, s{sHk[k]}, s{t1}"]
        return L
    A(*haddr())
    A.stamp("prewait")
    A(f"s_waitcnt vmcnt({outstanding_after(lambda p: p[1] == 0 and p[0] in 'ZAB')})")
    A.stamp("data0")
    A("s_barrier", *reads(0))
    for u in range(16):
        a, b = AFR[u & 1], BFR(u)
        if u in (1, 4, 8, 12): A.stamp(f"step{u}")
        mf = [f"{MF} {q4(GR)}, {q4(b)}, {q4(b)}, {'0' if u == 0 else q4(GR)}"] if "s" not in X else []
        for k in range(4):
            mf += [mfma(t, k, a, b) for t in (0, 1)]
            if u >= DELTA: mf += [mfma(t, k, a, BFR(u - DELTA)) for t in (2, 3)]
        A("s_waitcnt lgkmcnt(0)")
        if u < 15:
            A(*mf[:3])
            need = lambda p: p[1] == u + 1 and p[0] in "ZAB"
            A(f"s_waitcnt vmcnt({outstanding_after(need)})", "s_barrier")
            rd = reads(u + 1); dd = list(sched[u]); issued += dd
            rest = mf[3:]
            ns = len(rest)
            slots = [[] for _ in rest]
            RD = min(ns, int(os.environ.get("RD", "99")))
            for i, x in enumerate(rd): slots[min(i * RD // len(rd), ns - 1)].append(x)
            for i, p in enumerate(dd): slots[min((2*i + 1) * ns // (2*len(dd)), ns - 1)] += piece(*p)
            flat = []
            for m, sl in zip(rest, slots): flat += [m] + sl
            A(*hoist_m0(flat))
        else:
            assert not sched[u]
            A(f"v_and_b32 v{b+3}, v{vMask}, v{b+3}")
            A(*mf[:6])
            A(f"v_cndmask_b32_e64 v14, v{GR}, v{GR+1}, s[{sM1}:{sM1+1}]", f"v_cndmask_b32_e64 v14, v14, v{GR+2}, s[{sM2}:{sM2+1}]",
              f"v_cndmask_b32_e64 v14, v14, v{GR+3}, s[{sM3}:{sM3+1}]", f"ds_write_b32 v{vStW}, v14", mf[6])
            N = outstanding_after(lambda p: p[0] == "T") if DELTA else 63
            A(f"s_waitcnt vmcnt({N}) lgkmcnt(0)", "s_barrier")
            rd = []
            for k in range(4): rd += [f"v_xor_b32 v14, {64*k}, v{vStR}" if k else "", f"ds_read_b32 v{ST+2*k}, v{14 if k else vStR}"]
            rd = [x for x in rd if x]
            A(*rd)
            if DELTA: A(*treads(0))
            rest = mf[7:]
            st = [[f"v_fma_f32 v{ST+2*k}, v{ST+2*k}, v20, v21" for k in range(4)],
                  [f"v_rsq_f32 v{ST+2*k+1}, v{ST+2*k}" for k in range(4)],
                  [f"v_mul_f32 v{ST+2*k+1}, {fl(-1.4426950408889634)}, v{ST+2*k+1}" for k in range(4)]]
            A(f"v_mov_b32 v20, {fl(1/512)}", f"v_mov_b32 v21, {fl(1e-5)}")
            nr = len(rest)
            A(*rest[:nr-4], f"s_waitcnt lgkmcnt({2 if DELTA else 0})", *st[0], rest[nr-4], *st[1], rest[nr-3], rest[nr-2], *st[2], rest[nr-1])
    A.stamp("loopend")
    def epi(i, ks, T):
        prs = [(k, p) for k in ks for p in range(2)]
        m = len(prs)
        g = lambda k, p: acc(2*i, k) + 2*p
        uu = lambda k, p: acc(2*i+1, k) + 2*p
        L = []
        for x, (k, p) in enumerate(prs): L.append(f"v_pk_mul_f32 {p2(T+2*x)}, {p2(g(k,p))}, {p2(ST+2*k)} op_sel:[0,1] op_sel_hi:[1,1]")
        for x in range(m): L += [f"v_exp_f32 v{T+2*x}, v{T+2*x}", f"v_exp_f32 v{T+2*x+1}, v{T+2*x+1}"]
        for x, (k, p) in enumerate(prs): L.append(f"v_pk_mul_f32 {p2(T+2*m+2*x)}, {p2(g(k,p))}, {p2(uu(k,p))}")
        for x, (k, p) in enumerate(prs): L.append(f"v_pk_fma_f32 {p2(T+2*x)}, {p2(T+2*x)}, {p2(ST+2*k)}, {p2(ST+2*k)} op_sel_hi:[1,0,0]")
        for x in range(m): L += [f"v_rcp_f32 v{T+2*x}, v{T+2*x}", f"v_rcp_f32 v{T+2*x+1}, v{T+2*x+1}"]
        for x in range(m): L.append(f"v_pk_mul_f32 {p2(T+2*m+2*x)}, {p2(T+2*m+2*x)}, {p2(T+2*x)}")
        for x, (k, p) in enumerate(prs): L.append(f"v_cvt_pk_bf16_f32 v{OP+4*k+2*i+p}, v{T+2*m+2*x}, v{T+2*m+2*x+1}")
        return L
    def tail(fill):
        mm = []
        for i in range(DELTA):
            a = AFR[(16 + i) & 1]; b = BFR(16 - DELTA + i)
            grp = [mfma(t, k, a, b) for k in range(4) for t in (2, 3)]
            mm.append(grp)
        tot = 8 * DELTA; f = list(fill); done = 0; nf = len(f)
        for i in range(DELTA):
            A("s_waitcnt lgkmcnt(0)")
            if i + 1 < DELTA: A(*treads(i + 1))
            for x, m in enumerate(mm[i]):
                A(m); done += 1
                while f and (nf - len(f)) < nf * done / tot: A(f.pop(0))
        A(*f)
    hstore = lambda k: [f"v_add_u32 v14, s{sHk[k]}, v{vWo}", f"global_store_dwordx4 v14, {q4(OP+4*k)}, s[{WS}:{WS+1}]{SC1}"]
    A(f"s_cmp_ge_u32 s{sJ}, 14", f"s_cbranch_scc1 {n}_x3")
    if DELTA:
        TA_ = [32 - 0, 48]
        fill = epi(0, [0], 32) + epi(0, [1], 48) + epi(0, [2], 32) + epi(0, [3], 48) if "e" in X else None
        if fill is None:
            a0, a1, a2, a3 = epi(0, [0], 32), epi(0, [1], 48), epi(0, [2], 32), epi(0, [3], 48)
            def zip2(x, y):
                o = []
                for p, q in zip(x, y): o += [p, q]
                return o
            fill = zip2(a0, a1) + zip2(a2, a3)
        tail(fill)
        A.stamp("tailend")
        for ks in ([0, 1], [2, 3]):
            A(*epi(1, ks, 160 + 16*(ks[0] >> 1)))
            for k in ks: A(*hstore(k))
    else:
        A.stamp("tailend")
        for k in range(4):
            T = 192 + 16*(k & 1)
            e0, e1 = epi(0, [k], T), epi(1, [k], T + 8)
            o = []
            for p, q in zip(e0, e1): o += [p, q]
            A(*o, *hstore(k))
    A(f"s_branch {n}_fin")
    A.label(f"{n}_x3")
    A(f"s_lshl_b32 s{t0}, s{sRT}, 3", f"s_lshl_b32 s{t1}, s{sPH}, 2", f"s_add_u32 s{t0}, s{t0}, s{t1}", f"s_add_u32 s{t0}, s{t0}, s{sWFv}",
      f"s_sub_u32 s{t1}, s{sJ}, 14", f"s_lshl_b32 s{t1}, s{t1}, 3", f"s_lshl_b32 s{t2}, s{sWFv}, 1", f"s_add_u32 s{t1}, s{t1}, s{t2}", f"s_lshl_b32 s{t1}, s{t1}, 10",
      f"s_add_u32 s{t1}, s{t1}, {OFF['X3']}")
    for k in range(4):
        A(f"s_xor_b32 s{sHk[k]}, s{t0}, {k}", f"s_lshl_b32 s{sHk[k]}, s{sHk[k]}, 14", f"s_add_u32 s{sHk[k]}, s{sHk[k]}, s{t1}")
    def x3(k, p):
        O = OP + 4*((2*k + p) & 3)
        d0, d1 = acc(2*p, k), acc(2*p+1, k)
        return [f"v_cvt_pk_bf16_f32 v{O}, v{d0}, v{d0+1}", f"v_cvt_pk_bf16_f32 v{O+1}, v{d0+2}, v{d0+3}",
                f"v_cvt_pk_bf16_f32 v{O+2}, v{d1}, v{d1+1}", f"v_cvt_pk_bf16_f32 v{O+3}, v{d1+2}, v{d1+3}",
                f"v_add_u32 v14, s{sHk[k]}, v{vWo}", f"global_store_dwordx4 v14, {q4(O)}, s[{WS}:{WS+1}] offset:{1024*p}{SC1}"]
    if DELTA:
        tail([x for k in range(4) for x in x3(k, 0)])
        for k in range(4): A(*x3(k, 1))
    else:
        for k in range(4):
            for p in range(2): A(*x3(k, p))
    A(f"s_branch {n}_fin")
    A.label(f"{n}_skip")
    if "p" not in X:
        for i in range(14): A(*piece("P", i), "s_waitcnt vmcnt(0)")
    A.label(f"{n}_fin")
    A(f"s_lshl_b32 s{t0}, s2, 5", f"s_add_u32 s{t0}, s{t0}, {OFF['SSQ'] + LD}", f"v_lshl_add_u32 v14, v0, 2, s{t0}", "v_mov_b32 v15, 0",
      "v_cmp_gt_u32 vcc, 8, v0", f"s_and_saveexec_b64 s[{sEX}:{sEX+1}], vcc", f"s_cbranch_execz {n}_end",
      f"global_store_dword v14, v15, s[{WS}:{WS+1}]{SC1}")
    A.finish(n)
    lds = STAT + 512 + 256
    k0 = dict(name="glu0_kernel", lines=A.lines, vgpr=256, accum=256, sgpr=64, lds=lds, grid=256, block=512)
    k1 = dict(name="glu1_kernel", lines=[f"s_mov_b32 s{sLAY}, 1", "s_branch glu_body"], vgpr=256, accum=256, sgpr=64, lds=lds, grid=256, block=512)
    return [k0, k1]
```

```python
import sys
import os
from asmgen import Asm
Asm.PROF = os.environ.get("PROF") if os.environ.get("PROF") == "light" else bool(os.environ.get("PROF"))
from gen import *
from gen_fft import gen_fft
from gen_k1 import gen_k1b
ks = [gen_k1b() if not os.environ.get("OLDK1") else gen_k1()] + gen_fft()
L = ["k1_kernel", "fft0_kernel"]
try:
    from gen_glu import gen_glu
    from gen_glu2 import gen_glu as gen_glu2
    ks += gen_glu2(); L.append("glu0_kernel")
    from gen_down import gen_down
    ks += gen_down(); L += ["down0_kernel", "fft1_kernel", "glu1_kernel", "down1_kernel"]
except ImportError as e:
    print("partial:", e)
assemble(ks, L, sys.argv[1] if len(sys.argv) > 1 else "cur.s")
```

```python
from asmgen import *
from gen import *
import os

def gen_k1b(SC="sc1"):
    A = Asm(); n = "k1"
    sW, sP, sHF, sROLE, sK1 = 3, 24, 25, 26, 27
    sB, sSTR, sM, sMI, sT = 28, 30, 31, 32, 33
    sO, sO2 = 34, 36
    sFP = 38
    t0, t1, t2, t3 = 40, 41, 42, 43
    sEX = 44
    vLane, vQ, vL, vDA = 2, 3, 4, 5
    vR = [6, 7, 8, 9]
    vM1, vM2, vM3 = [10, 11], 12, [13, 14]
    vSc = [15, 16]
    vFW, vFT, vFW2, vFO = 17, 18, 19, 20
    FIL = 24
    FB = lambda mi, j: 32 + 16*mi + 4*j
    FD = lambda b, mi: 64 + 8*b + 4*mi
    IN = lambda b, nt: 80 + 16*b + 4*nt
    ACC = lambda nt, mi: 112 + 8*nt + 4*mi
    T = 144
    FIL1, FIL2, TRS = 65536, 73728, 81920
    q4 = lambda b: f"v[{b}:{b+3}]"
    p2 = lambda b: f"v[{b}:{b+1}]"
    sc = (" " + SC) if SC else ""
    prologue(A, n, 256)
    A(f"v_lshrrev_b32 v1, 6, v0", f"v_and_b32 v{vLane}, 63, v0", f"v_readfirstlane_b32 s{sW}, v1",
      f"v_bfe_u32 v{vQ}, v0, 4, 2", f"v_and_b32 v{vL}, 15, v0",
      f"s_and_b32 s{t0}, s2, 7", f"s_lshr_b32 s{t1}, s2, 4", f"s_lshl_b32 s{t1}, s{t1}, 3", f"s_add_u32 s{sP}, s{t0}, s{t1}",
      f"s_bfe_u32 s{sHF}, s2, 0x10003", f"s_lshr_b32 s{sK1}, s2, 2",
      f"v_lshrrev_b32 v21, 3, v{vLane}", f"v_and_b32 v22, 7, v{vLane}",
      f"s_and_b32 s{t0}, s{sW}, 3", f"s_mul_i32 s{t0}, s{t0}, {8*32896}", f"s_mul_i32 s{t1}, s{sK1}, 514", f"s_add_u32 s{t0}, s{t0}, s{t1}",
      f"s_and_b32 s{t1}, s2, 3", f"s_lshl_b32 s{t1}, s{t1}, 7", f"s_add_u32 s{t0}, s{t0}, s{t1}", f"s_add_u32 s{t0}, s{t0}, 2",
      f"v_mul_u32_u24 v23, 32896, v21", f"v_lshl_add_u32 v23, v22, 4, v23", f"v_add_u32 v23, s{t0}, v23",
      f"s_lshl_b32 s{sM}, s{sW}, 10",
      "s_waitcnt lgkmcnt(0)")
    A.stamp("kernarg")
    A(f"s_cmp_ge_u32 s{sW}, 4", f"s_cselect_b32 s{sFP}, s{WI}, s{WR}", f"s_cselect_b32 s{sFP+1}, s{WI+1}, s{WR+1}",
      f"global_load_dwordx4 {q4(FIL)}, v23, s[{sFP}:{sFP+1}]")
    A(f"s_cmp_ge_u32 s{sP}, 116", f"s_cbranch_scc1 {n}_helper",
      f"s_cmp_ge_u32 s{sP}, 60", f"s_cbranch_scc1 {n}_role_c",
      f"v_and_b32 v23, 6, v21", f"v_xor_b32 v23, v23, v22", f"v_lshlrev_b32 v23, 4, v23",
      f"s_mov_b32 s{sSTR}, 128", f"s_mov_b32 s{sMI}, 16", f"v_mov_b32 v21, v{vL}" if False else "",
      f"s_cmp_ge_u32 s{sP}, 32", f"s_cbranch_scc1 {n}_role_b")
    A(f"s_mov_b32 s{sROLE}, 0",
      f"s_bfe_u32 s{t0}, s{sW}, 0x10001", f"s_lshl_b32 s{t0}, s{t0}, 2", f"s_bfe_u32 s{t1}, s{sP}, 0x20001", f"s_lshl_b32 s{t1}, s{t1}, 3", f"s_add_u32 s{t0}, s{t0}, s{t1}",
      f"s_bfe_u32 s{t1}, s{sP}, 0x10003", f"s_lshl_b32 s{t1}, s{t1}, 5", f"s_add_u32 s{t0}, s{t0}, s{t1}", f"s_lshl_b32 s{t0}, s{t0}, 15",
      f"s_and_b32 s{t1}, s{sW}, 1", f"s_lshl_b32 s{t1}, s{t1}, 1", f"s_lshr_b32 s{t2}, s{sW}, 2", f"s_lshl_b32 s{t2}, s{t2}, 2", f"s_add_u32 s{t1}, s{t1}, s{t2}",
      f"s_and_b32 s{t2}, s{sP}, 1", f"s_lshl_b32 s{t2}, s{t2}, 3", f"s_add_u32 s{t1}, s{t1}, s{t2}",
      f"s_lshr_b32 s{t2}, s{sP}, 4", f"s_lshl_b32 s{t2}, s{t2}, 4", f"s_add_u32 s{t1}, s{t1}, s{t2}", f"s_lshl_b32 s{t1}, s{t1}, 10",
      f"s_add_u32 s{t0}, s{t0}, s{t1}",
      f"v_bfe_u32 v{vDA}, v{vLane}, 3, 2", f"v_lshl_add_u32 v{vDA}, v{vDA}, 15, v23", f"v_lshrrev_b32 v22, 5, v{vLane}", f"v_lshl_add_u32 v{vDA}, v22, 10, v{vDA}")
    sadd64(A, sB, X, f"s{t0}")
    A(f"s_branch {n}_issue")
    A.label(f"{n}_role_b")
    A(f"s_mov_b32 s{sROLE}, 1", f"s_sub_u32 s{sT}, s{sP}, 32", f"s_lshl_b32 s{t0}, s{sT}, 3", f"s_add_u32 s{t0}, s{t0}, s{sW}", f"s_lshl_b32 s{t0}, s{t0}, 13",
      f"v_lshl_add_u32 v{vDA}, v21, 10, v23")
    sadd64(A, sB, W2, f"s{t0}")
    A(f"s_branch {n}_issue")
    A.label(f"{n}_role_c")
    if os.environ.get("K1CMAP", "1") == "1":
        A(f"s_sub_u32 s{sT}, s{sP}, 60", f"s_lshr_b32 s{sT}, s{sT}, 3", f"s_and_b32 s{t0}, s{sP}, 7", f"s_mul_i32 s{t0}, s{t0}, 7", f"s_add_u32 s{sT}, s{sT}, s{t0}",
          f"s_cmp_ge_u32 s{sT}, 28", f"s_cselect_b32 s{t0}, 55, 0", f"s_lshl_b32 s{sT}, s{sT}, 1", f"s_sub_u32 s{sT}, s{sT}, s{t0}")
    else: A(f"s_sub_u32 s{sT}, s{sP}, 60")
    A(f"s_mov_b32 s{sROLE}, 2",
      f"s_and_b32 s{t0}, s{sW}, 1", f"s_lshl_b32 s{t0}, s{t0}, 2", f"v_and_b32 v23, 2, v21", f"v_or_b32 v23, s{t0}, v23", f"v_xor_b32 v23, v23, v22",
      f"v_lshlrev_b32 v23, 4, v23", f"v_mul_u32_u24 v{vDA}, 3584, v21", f"v_add_u32 v{vDA}, v{vDA}, v23",
      f"s_bitcmp1_b32 s{sT}, 0", f"s_cselect_b32 s{sB}, s{W3}, s{W1}", f"s_cselect_b32 s{sB+1}, s{W3+1}, s{W1+1}",
      f"s_lshr_b32 s{t0}, s{sT}, 1", f"s_lshl_b32 s{t0}, s{t0}, 7", f"s_mul_i32 s{t1}, s{sW}, {8*3584}", f"s_add_u32 s{t0}, s{t0}, s{t1}",
      f"s_mov_b32 s{sSTR}, {64*3584}", f"s_mov_b32 s{sMI}, 4")
    sadd64(A, sB, sB, f"s{t0}")
    A.label(f"{n}_issue")
    def dma(J):
        return [f"s_add_u32 m0, s{sM}, {J*8192}", f"global_load_lds_dwordx4 v{vDA}, s[{sB}:{sB+1}]",
                f"s_add_u32 s{sB}, s{sB}, s{sSTR}", f"s_addc_u32 s{sB+1}, s{sB+1}, 0"]
    vC, vK, vD, vA, vD25 = T, T+1, [T+2, T+3], [T+4, T+5], [T+6, T+7]
    setup = [
      f"v_lshrrev_b32 v{vC}, 2, v{vL}", f"v_lshlrev_b32 v{vC}, 3, v{vC}", f"v_and_b32 v{vK}, 3, v{vL}", f"v_add_u32 v{vC}, v{vC}, v{vK}",
      f"s_cmp_eq_u32 s{sROLE}, 2", f"s_cselect_b32 s{t0}, -1, 0", f"v_mov_b32 v{vK}, s{t0}", f"v_bfi_b32 v{vC}, v{vK}, v{vC}, v{vL}",
      f"s_lshl_b32 s{t0}, s{sHF}, 3", f"s_add_u32 s{t0}, s{t0}, s{sW}", f"s_lshl_b32 s{t0}, s{t0}, 5", f"v_add_u32 v{vC}, s{t0}, v{vC}",
      f"v_and_b32 v{T+8}, 1, v{vL}", f"v_cvt_f32_u32 v{T+9}, v{vQ}", f"v_mul_f32 v{T+9}, {fl(8.0)}, v{T+9}",
      f"v_cvt_f32_u32 v{T+10}, v{T+8}", f"v_mul_f32 v{T+10}, {fl(0.25)}, v{T+10}",
      f"v_mov_b32 v{T+11}, 0x80008000"]
    for mi in range(2):
        if mi: setup += [f"v_add_u32 v{vC}, s{sMI}, v{vC}"]
        setup += [f"v_lshrrev_b32 v{vK}, 1, v{vC}", f"v_add_u32 v{vK}, 1, v{vK}",
                  f"v_and_b32 v{T+12}, v{vK}, v{T+8}", f"v_bfe_u32 v{T+13}, v{vK}, 1, 1", f"v_xor_b32 v{T+12}, v{T+12}, v{T+13}",
                  f"v_mul_lo_u32 v{vM1[mi]}, v{T+12}, v{T+11}"]
        if mi == 0: setup += [f"v_and_b32 v{T+12}, 1, v{vK}", f"v_mul_lo_u32 v{vM2}, v{T+12}, v{T+11}"]
        setup += [f"v_xor_b32 v{vM3[mi]}, v{vM1[mi]}, v{vM2}",
                  f"v_cvt_f32_u32 v{vD[mi]}, v{vK}", f"v_mul_f32 v{vD[mi]}, {fl(1/512)}, v{vD[mi]}"]
        if mi == 1:
            setup += [f"v_cmp_ne_u32 vcc, 511, v{vC}", f"v_cndmask_b32 v{vD[mi]}, 0, v{vD[mi]}, vcc", f"v_cndmask_b32 v{T+14}, 0, v{T+10}, vcc"]
        setup += [f"v_fma_f32 v{vA[mi]}, v{vD[mi]}, v{T+9}, v{T+10 if mi == 0 else T+14}", f"v_mul_f32 v{vD25[mi]}, {fl(25.0)}, v{vD[mi]}"]
    setup += [f"v_mov_b32 v{vSc[0]}, {fl(1/16)}", f"v_mov_b32 v{T+12}, {fl(INV_SQRT512)}",
              f"v_cmp_le_u32 vcc, 510, v{vC}", f"v_cndmask_b32 v{vSc[1]}, v{vSc[0]}, v{T+12}, vcc"]
    setup = [x for x in setup if x]
    gen = []
    RAW = T + 16
    for j in range(4):
        for e in range(8):
            for mi in range(2):
                gen.append(f"v_cos_f32 v{RAW+8*mi+e}, v{vA[mi]}")
            for mi in range(2):
                if not (j == 3 and e == 7):
                    gen.append(f"v_add_f32 v{vA[mi]}, v{vA[mi]}, v{vD[mi] if e < 7 else vD25[mi]}")
            if e & 1:
                for mi in range(2):
                    gen.append(f"v_cvt_pk_bf16_f32 v{FB(mi,j)+(e>>1)}, v{RAW+8*mi+e-1}, v{RAW+8*mi+e}")
    body = setup + gen
    pers = [int(x) for x in os.environ.get("K1PER", "30,30,30,30,30,30,30,30").split(",")]
    for J in range(8):
        A(*dma(J))
        per = pers[J]
        A(*body[:per]); body = body[per:]
    A.stamp("issued")
    A(*body)
    A.stamp("fgen")
    def filter_addrs():
        L = [f"v_lshrrev_b32 v21, 3, v{vLane}", f"v_and_b32 v22, 7, v{vLane}",
             f"v_bfe_u32 v23, v{vLane}, 4, 1", f"v_lshlrev_b32 v23, 2, v23", f"v_xor_b32 v23, v23, v22", f"v_lshlrev_b32 v23, 4, v23",
             f"v_lshl_add_u32 v23, v21, 7, v23", f"s_add_u32 s{t0}, s{sM}, {FIL1}", f"v_add_u32 v{vFW}, s{t0}, v23",
             f"v_bfe_u32 v21, v{vLane}, 2, 2", f"v_and_b32 v22, 3, v{vLane}",
             f"s_lshr_b32 s{t0}, s{sW}, 2", f"s_lshl_b32 s{t0}, s{t0}, 5", f"s_and_b32 s{t1}, s{sW}, 3", f"s_lshl_b32 s{t1}, s{t1}, 2",
             f"s_add_u32 s{t0}, s{t0}, s{t1}", f"s_lshl_b32 s{t0}, s{t0}, 7", f"s_add_u32 s{t0}, s{t0}, {FIL1}",
             f"v_lshrrev_b32 v23, 1, v22", f"v_lshl_add_u32 v23, v{vQ}, 1, v23", f"v_lshrrev_b32 v{vFT}, 1, v21", f"v_lshlrev_b32 v{vFT}, 2, v{vFT}",
             f"v_xor_b32 v23, v23, v{vFT}", f"v_lshlrev_b32 v23, 4, v23", f"v_lshl_add_u32 v23, v21, 7, v23",
             f"v_and_b32 v22, 1, v22", f"v_lshl_add_u32 v23, v22, 3, v23", f"v_add_u32 v{vFT}, s{t0}, v23",
             f"s_and_b32 s{t0}, s{sW}, 3", f"s_lshl_b32 s{t0}, s{t0}, 1", f"s_lshr_b32 s{t1}, s{sW}, 2", f"s_add_u32 s{t0}, s{t0}, s{t1}",
             f"v_and_b32 v22, 7, v{vLane}", f"v_xor_b32 v22, s{t0}, v22", f"v_lshlrev_b32 v22, 4, v22", f"v_lshl_add_u32 v22, v{vLane}, 7, v22",
             f"v_add_u32 v{vFW2}, {FIL2}, v22",
             f"v_lshrrev_b32 v21, 3, v{vLane}", f"v_and_b32 v22, 7, v{vLane}", f"v_xor_b32 v22, v22, v21", f"v_lshlrev_b32 v22, 4, v22",
             f"v_lshl_add_u32 v22, v21, 13, v22",
             f"s_and_b32 s{t0}, s2, 3", f"s_lshl_b32 s{t0}, s{t0}, 3", f"s_add_u32 s{t0}, s{t0}, s{sW}", f"s_lshl_b32 s{t0}, s{t0}, 16",
             f"s_lshl_b32 s{t1}, s{sK1}, 7", f"s_add_u32 s{t0}, s{t0}, s{t1}", f"s_add_u32 s{t0}, s{t0}, {OFF['WF']}",
             f"v_add_u32 v{vFO}, s{t0}, v22"]
        return L
    A(*filter_addrs())
    fil_tr = [f"ds_read_b64_tr_b16 {p2(FIL)}, v{vFT}", f"ds_read_b64_tr_b16 {p2(FIL+2)}, v{vFT} offset:2048"]
    fil_w2 = [f"ds_write_b128 v{vFW2}, {q4(FIL)}"]
    fil_rd = lambda tmp: [f"v_lshlrev_b32 v{tmp}, 4, v{vLane}", f"s_add_u32 s{t0}, s{sM}, {FIL2}", f"v_add_u32 v{tmp}, s{t0}, v{tmp}", f"ds_read_b128 {q4(FIL)}, v{tmp}"]
    fil_st = [f"global_store_dwordx4 v{vFO}, {q4(FIL)}, s[{WS}:{WS+1}]{sc}"]
    A(f"s_cmp_eq_u32 s{sROLE}, 2", f"s_cbranch_scc1 {n}_pre_c")
    A(f"v_and_b32 v21, 6, v{vL}", f"v_xor_b32 v21, v21, v{vQ}", f"v_lshlrev_b32 v21, 4, v21", f"v_lshl_add_u32 v{vR[0]}, v{vL}, 7, v21",
      f"v_xor_b32 v{vR[1]}, 64, v{vR[0]}")
    def mainloop(role_c):
        def reads(s):
            b = s & 1; J = s >> 1
            if not role_c:
                return [f"ds_read_b128 {q4(IN(b,nt))}, v{vR[s&1]} offset:{J*8192 + nt*2048}" for nt in range(4)]
            return [f"ds_read_b64_tr_b16 {p2(IN(b,nt)+2*h)}, v{vR[nt]} offset:{J*8192 + (s&1)*4096 + h*512}" for nt in range(4) for h in range(2)]
        def fr(s, mi):
            return FB(mi, s & 3) if s < 4 else FD(s & 1, mi)
        def derive(s):
            r, j = s >> 2, s & 3
            L = []
            if r == 0: return L
            for mi in range(2):
                for e in range(4):
                    d, b = FD(s & 1, mi) + e, FB(mi, j) + e
                    if r == 2: L.append(f"v_xor_b32 v{d}, v{vM2}, v{b}")
                    else: L.append(f"v_xor_b32_dpp v{d}, v{b}, v{(vM1 if r == 1 else vM3)[mi]} quad_perm:[1,0,2,3] row_mask:0xf bank_mask:0xf")
            return L
        A("s_waitcnt vmcnt(8)", f"ds_write_b128 v{vFW}, {q4(FIL)}")
        A.stamp("filw")
        A("s_waitcnt vmcnt(7) lgkmcnt(0)")
        A.stamp("data0")
        A("s_barrier", *reads(0), *fil_tr)
        for s in range(16):
            if s in (1, 4, 8, 12): A.stamp(f"s{s}")
            mf = []
            for nt in range(4):
                for mi in range(2):
                    d = ACC(nt, mi); c = "0" if s == 0 else q4(d)
                    a, b = (q4(IN(s&1, nt)), q4(fr(s, mi))) if not role_c else (q4(fr(s, mi)), q4(IN(s&1, nt)))
                    mf.append(f"{MF} {q4(d)}, {a}, {b}, {c}")
            A("s_waitcnt lgkmcnt(0)")
            pre = []
            if s == 0: pre = fil_w2
            A(mf[0], *pre, mf[1])
            if s & 1 and s < 15:
                A(f"s_waitcnt vmcnt({7 - (s+1)//2})" + (" lgkmcnt(0)" if s == 1 else ""), "s_barrier")
            other = []
            if s < 15: other += reads(s+1)
            if s == 1: other += fil_rd(21)
            dv = derive(s+1) if s < 15 else []
            if s == 14: dv = dv + fil_st
            slots = [[] for _ in range(6)]
            for i, x in enumerate(other): slots[min(i * 6 // max(len(other), 1), 5)].append(x)
            for i, x in enumerate(dv): slots[min(i * 6 // max(len(dv), 1), 5)].append(x)
            for i, m in enumerate(mf[2:]): A(m, *slots[i])
    nst0 = A.nst
    mainloop(False)
    A.stamp("loopend")
    for nt in range(4):
        for mi in range(2):
            for e in range(4): A(f"v_mul_f32 v{ACC(nt,mi)+e}, v{vSc[mi]}, v{ACC(nt,mi)+e}")
    PK = lambda P, mi: 32 + 8*P + 4*mi
    for P in range(2):
        for mi in range(2):
            a0, a1, r = ACC(2*P, mi), ACC(2*P+1, mi), PK(P, mi)
            A(f"v_cvt_pk_bf16_f32 v{r}, v{a0}, v{a0+1}", f"v_cvt_pk_bf16_f32 v{r+1}, v{a0+2}, v{a0+3}",
              f"v_cvt_pk_bf16_f32 v{r+2}, v{a1}, v{a1+1}", f"v_cvt_pk_bf16_f32 v{r+3}, v{a1+2}, v{a1+3}")
    A(f"s_cmp_eq_u32 s{sROLE}, 1", f"s_cbranch_scc1 {n}_epi_b")
    A(f"s_lshl_b32 s{t0}, s{sW}, 12", f"s_add_u32 s{t0}, s{t0}, {TRS}",
      f"v_and_b32 v21, 7, v{vL}", f"v_xor_b32 v21, v21, v{vQ}", f"v_lshlrev_b32 v21, 4, v21", f"v_lshl_add_u32 v21, v{vL}, 7, v21",
      f"v_add_u32 v21, s{t0}, v21", f"v_xor_b32 v22, 64, v21")
    for P in range(2):
        for mi in range(2): A(f"ds_write_b128 v{22 if P else 21}, {q4(PK(P, mi))} offset:{mi*2048}")
    A(f"v_lshl_add_u32 v21, v{vLane}, 4, s{t0}",
      f"v_lshrrev_b32 v22, 3, v{vLane}", f"v_and_b32 v23, 7, v{vLane}", f"v_xor_b32 v23, v23, v22", f"v_lshlrev_b32 v23, 4, v23",
      f"v_lshl_add_u32 v23, v22, 12, v23",
      f"s_lshl_b32 s{t0}, s{sHF}, 3", f"s_add_u32 s{t0}, s{t0}, s{sW}", f"s_lshl_b32 s{t0}, s{t0}, 17", f"s_lshl_b32 s{t1}, s{sP}, 7",
      f"s_add_u32 s{t0}, s{t0}, s{t1}", f"s_add_u32 s{t0}, s{t0}, {OFF['ZA']}" if OFF['ZA'] else "")
    sadd64(A, sO, WS, f"s{t0}")
    A("s_waitcnt lgkmcnt(0)")
    for i in range(4): A(f"ds_read_b128 {q4(64+4*i)}, v21 offset:{i*1024}")
    for i in range(4):
        A(f"s_waitcnt lgkmcnt({3-i})", f"global_store_dwordx4 v23, {q4(64+4*i)}, s[{sO}:{sO+1}]{sc}")
        if i < 3: A(f"s_add_u32 s{sO}, s{sO}, 32768", f"s_addc_u32 s{sO+1}, s{sO+1}, 0")
    A(f"s_branch {n}_end")
    A.label(f"{n}_epi_b")
    A(f"s_lshl_b32 s{t0}, s{sHF}, 2", f"s_lshr_b32 s{t1}, s{sW}, 1", f"s_add_u32 s{t0}, s{t0}, s{t1}", f"s_lshl_b32 s{t0}, s{t0}, 13",
      f"s_and_b32 s{t1}, s{sW}, 1", f"s_lshl_b32 s{t1}, s{t1}, 2",
      f"v_bfe_u32 v21, v{vLane}, 2, 2", f"v_and_b32 v22, 3, v{vLane}",
      f"v_lshl_add_u32 v23, v{vQ}, 2, v21",
      f"v_and_b32 v21, 6, v23", f"v_lshlrev_b32 v23, 7, v23",
      f"v_lshrrev_b32 v{T}, 1, v22", f"v_or_b32 v{T}, s{t1}, v{T}", f"v_xor_b32 v{T}, v{T}, v21", f"v_lshl_add_u32 v23, v{T}, 4, v23",
      f"v_and_b32 v22, 1, v22", f"v_lshl_add_u32 v23, v22, 3, v23", f"v_add_u32 v23, s{t0}, v23", f"v_xor_b32 v22, 32, v23")
    WT = lambda i2, kc: 64 + 8*i2 + 4*kc
    for i2 in range(2):
        for kc in range(2):
            for h in range(2):
                A(f"ds_read_b64_tr_b16 {p2(WT(i2,kc)+2*h)}, v{22 if i2 else 23} offset:{kc*4096 + h*2048}")
    A(f"s_lshl_b32 s{t0}, s{sHF}, 4", f"s_lshl_b32 s{t1}, s{sW}, 1", f"s_add_u32 s{t0}, s{t0}, s{t1}", f"s_mul_i32 s{t0}, s{t0}, 56",
      f"s_lshl_b32 s{t1}, s{sT}, 1", f"s_add_u32 s{t0}, s{t0}, s{t1}", f"s_lshl_b32 s{t0}, s{t0}, 10",
      f"s_add_u32 s{t1}, s{t0}, {OFF['W2P']}", f"s_add_u32 s{t2}, s{t0}, {OFF['W2T']}",
      f"v_lshlrev_b32 v21, 4, v{vLane}", f"v_add_u32 v22, {56*1024}, v21")
    sadd64(A, sO, WS, f"s{t1}"); sadd64(A, sO2, WS, f"s{t2}")
    for mi in range(2):
        for P in range(2): A(f"global_store_dwordx4 v{22 if mi else 21}, {q4(PK(P, mi))}, s[{sO}:{sO+1}] offset:{P*1024}{sc}")
    A("s_waitcnt lgkmcnt(0)")
    for i2 in range(2):
        for kc in range(2): A(f"global_store_dwordx4 v{22 if i2 else 21}, {q4(WT(i2, kc))}, s[{sO2}:{sO2+1}] offset:{kc*1024}{sc}")
    A(f"s_branch {n}_end")
    A.label(f"{n}_pre_c")
    A(f"v_bfe_u32 v21, v{vLane}, 2, 2", f"v_and_b32 v22, 3, v{vLane}",
      f"v_lshl_add_u32 v23, v{vQ}, 3, v21", f"v_lshlrev_b32 v23, 7, v23",
      f"v_and_b32 v21, 2, v21", f"v_and_b32 v{T}, 1, v{vQ}", f"v_lshl_add_u32 v21, v{T}, 2, v21",
      f"v_lshrrev_b32 v{T}, 1, v22", f"v_xor_b32 v21, v21, v{T}", f"v_lshl_add_u32 v23, v21, 4, v23",
      f"v_and_b32 v22, 1, v22", f"v_lshl_add_u32 v{vR[0]}, v22, 3, v23")
    for nt in range(1, 4): A(f"v_xor_b32 v{vR[nt]}, {32*nt}, v{vR[0]}")
    nst1 = A.nst; A.nst = nst0
    mainloop(True)
    A.stamp("loopend_c")
    assert A.nst == nst1
    A(f"s_lshl_b32 s{t0}, s{sHF}, 3", f"s_add_u32 s{t0}, s{t0}, s{sW}", f"s_cmp_eq_u32 s{t0}, 15", f"s_cselect_b32 s{t1}, 3, 99",
      f"v_cmp_eq_u32 vcc, s{t1}, v{vQ}", f"v_mov_b32 v21, {fl(1/16)}", f"v_mov_b32 v22, {fl(INV_SQRT512)}",
      f"v_cndmask_b32 v22, v21, v22, vcc", f"v_cndmask_b32 v23, v21, 0, vcc" if False else f"v_mov_b32 v23, 0", f"v_cndmask_b32 v23, v21, v23, vcc")
    for nt in range(4):
        for mi in range(2):
            for e in range(4):
                r = 21 if not (mi == 1 and e >= 2) else (22 if e == 2 else 23)
                A(f"v_mul_f32 v{ACC(nt,mi)+e}, v{r}, v{ACC(nt,mi)+e}")
    A(f"s_lshr_b32 s{t1}, s{sT}, 2", f"s_lshl_b32 s{t1}, s{t1}, 18", f"s_lshl_b32 s{t0}, s{t0}, 14", f"s_add_u32 s{t0}, s{t0}, s{t1}",
      f"s_bfe_u32 s{t1}, s{sT}, 0x10001", f"s_lshl_b32 s{t1}, s{t1}, 13", f"s_add_u32 s{t0}, s{t0}, s{t1}",
      f"s_and_b32 s{t1}, s{sT}, 1", f"s_lshl_b32 s{t1}, s{t1}, 10", f"s_add_u32 s{t0}, s{t0}, s{t1}", f"s_add_u32 s{t0}, s{t0}, {OFF['W13']}",
      f"v_lshlrev_b32 v24, 4, v{vLane}", f"v_add_u32 v25, 4096, v24")
    sadd64(A, sO, WS, f"s{t0}")
    for nt in range(4):
        a0, a1, r = ACC(nt, 0), ACC(nt, 1), 32 + 4*nt
        A(f"v_cvt_pk_bf16_f32 v{r}, v{a0}, v{a0+1}", f"v_cvt_pk_bf16_f32 v{r+1}, v{a0+2}, v{a0+3}",
          f"v_cvt_pk_bf16_f32 v{r+2}, v{a1}, v{a1+1}", f"v_cvt_pk_bf16_f32 v{r+3}, v{a1+2}, v{a1+3}",
          f"global_store_dwordx4 v{25 if nt >> 1 else 24}, {q4(r)}, s[{sO}:{sO+1}] offset:{(nt&1)*2048}{sc}")
    A(f"s_branch {n}_end")
    A.label(f"{n}_helper")
    A(f"s_cmp_ge_u32 s2, 240", f"s_cbranch_scc0 {n}_fslice")
    RW = 32
    A(f"s_sub_u32 s{sT}, s2, 240",
      f"s_and_b32 s{t0}, s{sT}, 3", f"s_lshl_b32 s{t0}, s{t0}, 3", f"s_bfe_u32 s{t1}, s{sT}, 0x10002", f"s_lshl_b32 s{t1}, s{t1}, 5",
      f"s_add_u32 s{t0}, s{t0}, s{t1}", f"s_lshl_b32 s{t0}, s{t0}, 15",
      f"s_lshl_b32 s{t1}, s{sW}, 1", f"s_lshr_b32 s{t2}, s{sT}, 3", f"s_lshl_b32 s{t2}, s{t2}, 4", f"s_add_u32 s{t1}, s{t1}, s{t2}", f"s_lshl_b32 s{t1}, s{t1}, 10",
      f"s_add_u32 s{t0}, s{t0}, s{t1}", f"v_lshlrev_b32 v21, 4, v{vLane}")
    sadd64(A, sB, X, f"s{t0}")
    A(f"v_and_b32 v21, 7, v{vL}", f"v_lshlrev_b32 v21, 15, v21", f"v_lshrrev_b32 v22, 3, v{vL}", f"v_lshl_add_u32 v21, v22, 10, v21",
      f"v_lshl_add_u32 v21, v{vQ}, 4, v21")
    for j in range(16): A(f"global_load_dwordx4 {q4(RW+4*j)}, v21, s[{sB}:{sB+1}]" + (f" offset:{64*j}" if j else ""))
    A(*filter_addrs())
    A("s_waitcnt vmcnt(16)", f"ds_write_b128 v{vFW}, {q4(FIL)}", "s_waitcnt lgkmcnt(0)", "s_barrier", *fil_tr, "s_waitcnt lgkmcnt(0)", *fil_w2,
      "s_waitcnt lgkmcnt(0)", "s_barrier", *fil_rd(21))
    G, RS, ONE = [96, 100], [104, 108], 112
    for e in range(4): A(f"v_mov_b32 v{ONE+e}, 0x3f803f80")
    for j in range(16):
        A(f"s_waitcnt vmcnt({15-j})",
          f"{MF} {q4(G[j&1])}, {q4(RW+4*j)}, {q4(RW+4*j)}, " + ("0" if j < 2 else q4(G[j&1])),
          f"{MF} {q4(RS[j&1])}, {q4(RW+4*j)}, {q4(ONE)}, " + ("0" if j < 2 else q4(RS[j&1])))
    A("s_waitcnt lgkmcnt(0)", *fil_st)
    for e in range(4): A(f"v_add_f32 v{G[0]+e}, v{G[0]+e}, v{G[1]+e}", f"v_add_f32 v{RS[0]+e}, v{RS[0]+e}, v{RS[1]+e}")
    A(f"v_and_b32 v22, 3, v{vL}")
    for e in range(1, 4):
        A(f"v_cmp_eq_u32 vcc, {e}, v22", f"v_cndmask_b32 v{G[0]}, v{G[0]}, v{G[0]+e}, vcc", f"v_cndmask_b32 v{RS[0]}, v{RS[0]}, v{RS[0]+e}, vcc")
    A(f"v_mul_f32 v23, {fl(-1/512)}, v{RS[0]}", f"v_fmac_f32 v{G[0]}, v23, v{RS[0]}", f"v_max_f32 v{G[0]}, 0, v{G[0]}")
    A(f"s_lshl_b32 s{t0}, s{sT}, 3", f"s_add_u32 s{t0}, s{t0}, s{sW}", f"s_lshl_b32 s{t0}, s{t0}, 6", f"s_add_u32 s{t0}, s{t0}, {OFF['SSQ']}",
      f"v_lshl_add_u32 v22, v{vL}, 2, s{t0}", f"v_lshrrev_b32 v23, 2, v{vL}", f"v_cmp_eq_u32 vcc, v23, v{vQ}", f"s_and_saveexec_b64 s[{sEX}:{sEX+1}], vcc",
      f"global_store_dword v22, v{G[0]}, s[{WS}:{WS+1}]{sc}", f"s_branch {n}_end")
    A.label(f"{n}_fslice")
    A(*filter_addrs())
    A("s_waitcnt vmcnt(0)", f"ds_write_b128 v{vFW}, {q4(FIL)}", "s_waitcnt lgkmcnt(0)", "s_barrier", *fil_tr, "s_waitcnt lgkmcnt(0)", *fil_w2,
      "s_waitcnt lgkmcnt(0)", "s_barrier", *fil_rd(21), "s_waitcnt lgkmcnt(0)", *fil_st)
    A(f"s_and_b32 s{sT}, s2, 3",
      f"s_lshl_b32 s{t0}, s{sW}, 4", f"s_lshl_b32 s{t1}, s{sHF}, 8", f"s_add_u32 s{t0}, s{t0}, s{t1}",
      f"v_add_u32 v32, s{t0}, v{vL}",
      f"v_add_u32 v33, 128, v32",
      f"s_lshl_b32 s{t0}, s{sT}, 6", f"s_add_u32 s{t0}, s{t0}, 1", f"v_lshl_add_u32 v34, v{vQ}, 2, s{t0}",
      f"s_add_u32 s{t0}, s{sHF}, 14", f"s_lshl_b32 s{t0}, s{t0}, 18", f"s_lshl_b32 s{t1}, s{sT}, 16", f"s_add_u32 s{t0}, s{t0}, s{t1}",
      f"s_add_u32 s{t0}, s{t0}, s{sM}", f"s_add_u32 s{t0}, s{t0}, {OFF['W13']}", f"v_lshlrev_b32 v35, 4, v{vLane}")
    sadd64(A, sO, WS, f"s{t0}")
    A(f"v_mov_b32 v36, {fl(1/16)}", f"v_mov_b32 v37, {fl(-1/16)}", f"v_mov_b32 v38, {fl(INV_SQRT512)}")
    for it in range(8):
        d = 32 + (it & 1)
        A(f"v_add_u32 v40, {16*(it>>1)}, v34")
        for i in range(4):
            A(f"v_add_u32 v41, {i}, v40", f"v_mul_u32_u24 v41, v41, v{d}", f"v_and_b32 v41, 511, v41", f"v_cvt_f32_u32 v41, v41",
              f"v_mul_f32 v{44+i}, {fl(1/512)}, v41")
        for i in range(4): A(f"v_cos_f32 v{48+2*i}, v{44+i}", f"v_sin_f32 v{49+2*i}, v{44+i}")
        for i in range(4): A(f"v_mul_f32 v{48+2*i}, v36, v{48+2*i}", f"v_mul_f32 v{49+2*i}, v37, v{49+2*i}")
        if it >= 6:
            A(f"v_cmp_eq_u32 vcc, 253, v40", f"v_mul_f32 v41, {fl(16*INV_SQRT512)}, v54", f"v_cndmask_b32 v54, v54, v41, vcc", f"v_cndmask_b32 v55, v55, v38, vcc")
        r = 56 + 4*(it & 1)
        for i in range(4): A(f"v_cvt_pk_bf16_f32 v{r+i}, v{48+2*i}, v{49+2*i}")
        off = (it >> 1)*16384 + (it & 1)*8192
        A(f"v_add_u32 v42, {off}, v35", f"global_store_dwordx4 v42, {q4(r)}, s[{sO}:{sO+1}]{sc}")
    A.finish(n)
    return dict(name="k1_kernel", lines=[l for l in A.lines if l], vgpr=240, accum=240, sgpr=64, lds=TRS + 32768, grid=256, block=512)
```
